```python
import torch

def _softmax(x, axis=-1):
    return torch.softmax(x, dim=axis)
def _gelu(x):
    return torch.nn.functional.gelu(x, approximate="tanh")
def _silu(x):
    return torch.nn.functional.silu(x)
def _sigmoid(x):
    return torch.sigmoid(x)
def _layernorm(x, axis=-1, eps=1e-5):
    m = x.mean(dim=axis, keepdim=True)
    v = x.var(dim=axis, keepdim=True, unbiased=False)
    return (x - m) / torch.sqrt(v + eps)
def _scatter_add(tgt, idx, src, axis=0):
    return tgt.clone().index_add_(axis, idx, src)
def _segment_sum(src, seg, n):
    out = torch.zeros((n,) + src.shape[1:], dtype=src.dtype)
    return out.index_add_(0, seg, src)
def _pad(x, pw):
    flat = tuple(v for pair in reversed(pw) for v in pair)
    return torch.nn.functional.pad(x, flat)

kernel_name = 'standalone__mha_block_cached__decode'

def setup_inputs():

    _w = (lambda a: (lambda t: t.to(torch.bfloat16) if t.is_floating_point() else t)(torch.as_tensor(a)))
    B, Sq, D = 2, 1, 640
    H, Sk, Dh = 32, 16384, 128
    return {
        "x": _w((lambda *s: torch.randn(*s, dtype=torch.bfloat16) * 0.8)(B, Sq, D)),
        "k_cache": _w((lambda *s: torch.randn(*s, dtype=torch.bfloat16) * 0.8)(B, H, Sk, Dh)),
        "v_cache": _w((lambda *s: torch.randn(*s, dtype=torch.bfloat16) * 0.05)(B, H, Sk, Dh)),
        "wq": _w((lambda *s: torch.randn(*s, dtype=torch.bfloat16) * 0.8)(D, H * Dh) * (D ** -0.5)),
        "wo": _w((lambda *s: torch.randn(*s, dtype=torch.bfloat16) * 0.05)(H * Dh, D) * ((H * Dh) ** -0.5)),
    }

def reference(x, k_cache, v_cache, wq, wo):
    B, Sq, D = x.shape
    H, Dh = 32, 128
    q = (lambda x, *d: x.permute(*d))((x @ wq).reshape(B, Sq, H, Dh), 0, 2, 1, 3)
    scores = torch.einsum("bhqd,bhkd->bhqk", q, k_cache) * (Dh ** -0.5)
    p = _softmax(scores, axis=-1)
    o = torch.einsum("bhqk,bhkd->bhqd", p, v_cache)
    return (lambda x, *d: x.permute(*d))(o, 0, 2, 1, 3).reshape(B, Sq, H * Dh) @ wo
```

```python
import re

TRANS = ("v_exp_f32", "v_log_f32", "v_rcp_f32", "v_rsq_f32", "v_sqrt_f32", "v_sin_f32", "v_cos_f32")

def regs_of(op):
    op = op.strip()
    neg = op.lstrip("-")
    if neg.startswith("abs(") or neg.startswith("|"):
        neg = neg.strip("|").replace("abs(", "").rstrip(")")
    m = re.fullmatch(r"([vsa])\[(\d+):(\d+)\]", neg)
    if m:
        return {(m.group(1), i) for i in range(int(m.group(2)), int(m.group(3)) + 1)}
    m = re.fullmatch(r"([vsa])(\d+)", neg)
    if m:
        return {(m.group(1), int(m.group(2)))}
    if neg == "vcc": return {("s", 106), ("s", 107)}
    if neg == "vcc_lo": return {("s", 106)}
    if neg == "vcc_hi": return {("s", 107)}
    if neg == "exec": return {("s", 126), ("s", 127)}
    if neg == "m0": return {("s", 124)}
    return set()

class Ins:
    def __init__(self, text):
        self.text = text
        t = text.split(";")[0].strip()
        self.label = None
        self.mn = None
        if not t or t.startswith("."):
            return
        if t.endswith(":"):
            self.label = t[:-1]; return
        parts = t.split(None, 1)
        self.mn = parts[0]
        rest = parts[1] if len(parts) > 1 else ""
        ops, depth, cur = [], 0, ""
        for ch in rest:
            if ch in "[(": depth += 1
            if ch in "])": depth -= 1
            if ch == "," and depth == 0:
                ops.append(cur.strip()); cur = ""
            else:
                cur += ch
        if cur.strip(): ops.append(cur.strip())
        mods = ""
        if ops:
            sp = ops[-1].split(None, 1)
            ops[-1] = sp[0]
            mods = sp[1] if len(sp) > 1 else ""
        self.ops, self.mods = ops, mods
        mn = self.mn
        self.is_mfma = mn.startswith("v_mfma")
        self.is_valu = mn.startswith("v_") and not self.is_mfma
        self.is_dot = mn.startswith("v_dot")
        self.is_trans = any(mn.startswith(x) for x in TRANS)
        self.is_dpp = mn.endswith("_dpp") or "row_" in mods or "quad_perm" in mods
        self.is_perml = mn.startswith("v_permlane")
        self.is_rdlane = mn.startswith("v_readlane") or mn.startswith("v_readfirstlane")
        self.is_wrlane = mn.startswith("v_writelane")
        self.is_vmem = mn.startswith(("buffer_", "global_", "flat_"))
        self.is_ds = mn.startswith("ds_")
        self.is_salu = mn.startswith("s_")
        R = [regs_of(o) for o in ops]
        self.w, self.r = set(), set()
        self.srcC = set(); self.srcAB = set()
        if self.is_mfma:
            self.w = R[0]; self.srcAB = R[1] | R[2]; self.srcC = R[3]; self.r = self.srcAB | self.srcC
            self.passes = 4 if "16x16" in mn else (8 if "32x32" in mn else 2)
        elif self.is_valu:
            self.w = set(R[0])
            k = 1
            if "_co_" in mn or mn.startswith("v_div_scale"):
                self.w |= R[1]; k = 2
            for x in R[k:]: self.r |= x
            if self.is_perml: self.w |= R[1]; self.r |= R[0]
            if mn.startswith(("v_fmac", "v_dot2c", "v_writelane")) or (self.is_dpp):
                self.r |= R[0]
            if mn.startswith("v_cmpx"): self.w |= regs_of("exec")
            if self.is_dot and len(R) >= 4:
                self.srcAB = R[1] | R[2]; self.srcC = R[3]
            elif self.is_dot:
                self.srcAB = R[1] | R[2]; self.srcC = R[0]
            self.dppsrc = R[1] if self.is_dpp else set()
        elif self.is_vmem:
            isload = "load" in mn
            ret_atomic = "atomic" in mn and "sc0" in mods
            if (isload and "lds" not in mods and "lds" not in mn) or (ret_atomic and mn.startswith("global")):
                self.w = R[0]
                for x in R[1:]: self.r |= x
            else:
                for x in R: self.r |= x
                if ret_atomic: self.w = R[0]
            self.wide_store = ("store" in mn) and ("x3" in mn or "x4" in mn)
            if self.wide_store:
                self.sdata = R[0] if mn.startswith("buffer") else R[1]
        elif self.is_ds:
            if "read" in mn or "permute" in mn or "swizzle" in mn or "rtn" in mn:
                self.w = R[0]
                for x in R[1:]: self.r |= x
            else:
                for x in R: self.r |= x
        elif self.is_salu:
            if mn.startswith(("s_cmp", "s_cbranch", "s_branch", "s_waitcnt", "s_nop", "s_barrier", "s_endpgm", "s_sleep", "s_setprio", "s_bitcmp", "s_setpc")):
                for x in R: self.r |= x
            else:
                if R: self.w = set(R[0])
                for x in R[1:]: self.r |= x
                if "saveexec" in mn: self.w |= regs_of("exec")
    def states(self):
        if self.mn == "s_nop": return int(self.ops[0], 0) + 1
        return 1

V = lambda s: {x for x in s if x[0] in "va"}
S = lambda s: {x for x in s if x[0] == "s"}
EXEC = {("s", 126), ("s", 127)}

def need(p, c):
    n = 0
    if p.is_valu:
        pw = V(p.w)
        if c.is_valu and c.is_dpp and pw & c.dppsrc: n = max(n, 2)
        if c.is_mfma and pw & c.r: n = max(n, 3 if p.is_dot else 2)
        if c.is_rdlane and pw & c.r: n = max(n, 1)
        if c.is_perml and pw & c.r: n = max(n, 2)
        if p.is_trans and c.is_valu and not c.is_trans and pw & c.r: n = max(n, 1)
        if p.is_trans and c.is_valu and c.is_trans and pw & c.r: n = max(n, 1)
        if p.is_dot:
            if c.mn == p.mn:
                if pw & c.srcAB: n = max(n, 3)
            elif (c.is_valu or c.is_vmem or c.is_ds or c.is_mfma) and pw & (c.r | c.w): n = max(n, 3)
        sw = S(p.w)
        if sw:
            if c.is_valu and sw & c.r: n = max(n, 4 if (c.is_rdlane or c.is_wrlane) else 2)
            if c.is_valu and c.mn.startswith(("v_cndmask", "v_addc", "v_subb")) and len(c.ops) <= 3 and sw & regs_of("vcc"): n = max(n, 2)
            if c.is_vmem and sw & c.r: n = max(n, 5)
            if c.is_salu and sw & c.r: n = max(n, 1)
            if c.mn in ("s_cbranch_vccz", "s_cbranch_vccnz") and sw & regs_of("vcc"): n = max(n, 1)
            if sw & EXEC:
                if c.is_valu and c.is_dpp: n = max(n, 5)
                if c.is_mfma or c.is_rdlane or c.is_wrlane or c.is_perml: n = max(n, 4)
    if p.is_mfma:
        tab = {2: (5, 4, 1), 4: (8, 6, 3), 8: (12, 10, 7)}[p.passes]
        if c.is_mfma:
            if p.w & c.srcAB: n = max(n, tab[0])
            if p.w & c.srcC and not (p.w == c.srcC and p.passes == c.passes): n = max(n, tab[1])
            if p.w & c.srcC and p.passes == 2: n = max(n, 2)
        elif (c.is_valu or c.is_vmem or c.is_ds) and p.w & (c.r | c.w): n = max(n, tab[0])
        if c.is_valu and p.srcC & V(c.w): n = max(n, tab[2])
    if p.is_vmem and getattr(p, "wide_store", False):
        if p.sdata & V(c.w): n = max(n, 2 if c.is_valu else 1)
    if p.is_salu and ("s", 124) in p.w:
        if c.is_vmem and ("lds" in c.mods or "lds" in c.mn): n = max(n, 1)
        if c.is_ds and "addtid" in c.mn: n = max(n, 1)
    return n

MAXN = 12

def pad(lines, verbose=False):
    lines = list(lines)
    total = 0
    start = 0
    ins = [Ins(l) for l in lines]
    while True:
        labels = {x.label: i for i, x in enumerate(ins) if x.label}
        preds = {i: [] for i in range(len(ins))}
        for i, x in enumerate(ins):
            fall = True
            if x.mn in ("s_branch", "s_endpgm", "s_setpc_b64"): fall = False
            if x.mn and (x.mn == "s_branch" or x.mn.startswith("s_cbranch")):
                preds[labels[x.ops[0]]].append(i)
            if fall and i + 1 < len(ins): preds[i + 1].append(i)
        fix = None
        for ci, c in enumerate(ins):
            if not c.mn or ci < start: continue
            worst = 0; who = None
            stack = [(p, 0) for p in preds[ci]]
            seen = set()
            while stack:
                pi, dist = stack.pop()
                if (pi, dist) in seen: continue
                seen.add((pi, dist))
                p = ins[pi]
                nd = dist
                if p.mn:
                    k = need(p, c) - dist
                    if k > worst: worst, who = k, p
                    nd = dist + p.states()
                if nd < MAXN:
                    for q in preds[pi]: stack.append((q, nd))
            if worst > 0:
                fix = (ci, worst, who); break
        if not fix: break
        ci, k, who = fix
        if verbose: print(f"pad {k} before line {ci}: {lines[ci].strip()}   <- {who.text.strip()}")
        lines.insert(ci, f"    s_nop {k-1}")
        ins.insert(ci, Ins(lines[ci]))
        total += 1
        start = ci
    return lines, total
```

```python
import sys, math, struct
sys.path.insert(0, "gen")
from hazard import pad
NAME = "standalone__mha_block_cached__decode_kernel"
HEADER = open("standalone__mha_block_cached__decode.s.ref").read().split("; Override launch")[0] if True else ""

def f32(x): return "0x%08x" % struct.unpack("<I", struct.pack("<f", x))[0]
def brev4(t): return int("{:04b}".format(t)[::-1], 2)

L_Q, L_STAT, L_FAC, L_O, L_Y, L_TOT = 0, 2048, 2080, 4096, 8192, 19456
WS_STAT, WS_REC, WS_STAMP = 0, 65536, 1 << 24
SPIN = 1 << 20

def gen(D=5, Dend=5, Dq=8, Dw=2, rot=5, polkv="nt", polq="nt", polo="nt", stamps=False, verbose=False, prio=0):
    L = []
    def A(s): L.append(("" if s.endswith(":") or s.startswith((".", ";")) else "    ") + s)
    pk = " " + polkv if polkv else ""
    pq = " " + polq if polq else ""
    po = " " + polo if polo else ""
    def stamp(k):
        if stamps:
            A("s_memrealtime s[90:91]"); A("s_waitcnt lgkmcnt(0)"); A(f"v_writelane_b32 v63, s90, {k}")
    def stamp_flush():
        if stamps:
            A("s_mov_b64 exec, -1")
            A("s_getreg_b32 s92, hwreg(HW_REG_XCC_ID)"); A("v_writelane_b32 v63, s92, 63")
            A("s_lshl_b32 s92, s2, 3"); A("s_add_u32 s92, s92, s3"); A("s_lshl_b32 s92, s92, 8"); A(f"s_add_u32 s92, s92, {WS_STAMP}")
            A("v_lshlrev_b32 v62, 2, v0"); A("v_add_u32 v62, s92, v62")
            A("global_store_dword v62, v63, s[18:19]")
    A(f"; @launch grid=(256,1,1) block=(512,1,1) lds={L_TOT}")
    A('.amdgcn_target "amdgcn-amd-amdhsa--gfx950"')
    A(".text"); A(f".globl {NAME}"); A(".p2align 8"); A(f".type {NAME},@function"); A(f"{NAME}:")
    A("s_cmp_ge_u32 s2, 256"); A("s_cbranch_scc1 L_end")
    A("s_load_dwordx16 s[4:19], s[0:1], 0")
    A("v_lshrrev_b32 v1, 6, v0")
    A("s_and_b32 s24, s2, 7"); A("s_lshr_b32 s25, s2, 3")
    A("v_readfirstlane_b32 s3, v1")
    A("v_and_b32 v0, 63, v0                 ; lane")
    A("s_and_b32 s26, s25, 3"); A("s_bfe_u32 s27, s25, 0x20002   ; split"); A("s_lshr_b32 s28, s25, 4   ; b")
    A("s_lshl_b32 s24, s24, 2"); A("s_add_u32 s29, s24, s26   ; h")
    A("s_lshl_b32 s30, s28, 5"); A("s_add_u32 s30, s30, s29   ; bh")
    A("s_lshl_b32 s31, s30, 2"); A("s_add_u32 s31, s31, s27")
    if stamps:
        A("v_mov_b32 v63, 0"); stamp(0)
    A("s_cmp_ge_u32 s3, 4"); A("s_cbranch_scc1 L_helper")

    def masks():
        A("v_and_b32 v10, 15, v0")
        A("v_and_b32 v11, 1, v0"); A("v_lshlrev_b32 v11, 4, v11")
        A("v_mov_b32 v12, 0xffff"); A("v_lshlrev_b32 v11, v11, v12")
        A("v_lshrrev_b32 v10, 1, v10")
        for w in range(4):
            A(f"v_cmp_eq_u32 vcc, {w}, v10"); A(f"v_cndmask_b32 v{6+w}, 0, v11, vcc")
    RING = 128
    S0 = 22
    PA, PB, PC, PD, PT = 40, 42, 44, 46, 48
    TMP = 64
    if prio: A(f"s_setprio {prio}")
    A("v_lshlrev_b32 v1, 4, v0"); A("s_lshl_b32 s33, s3, 12"); A("v_add_u32 v1, s33, v1")
    A(f"s_mul_i32 s32, s2, {rot*16384}"); A("s_and_b32 s32, s32, 0xfffff")
    A("s_lshl_b32 s33, s31, 20")
    A("s_mov_b32 s22, 0x100000"); A("s_mov_b32 s23, 0x20000")
    A("s_waitcnt lgkmcnt(0)")
    A("s_add_u32 s20, s6, s33"); A("s_addc_u32 s21, s7, 0")
    def issue(n):
        r = RING + (n % 32) * 4
        A(f"buffer_load_dwordx4 v[{r}:{r+3}], v1, s[20:23], s32 offen offset:{(n%4)*1024}{pk}")
        if n % 4 == 3:
            A("s_add_u32 s32, s32, 0x4000"); A("s_and_b32 s32, s32, 0xfffff")
    for n in range(31):
        if n >= D: A(f"s_waitcnt vmcnt({D-1})")
        issue(n)
        if n == D - 1:
            A("s_add_u32 s34, s8, s33"); A("s_addc_u32 s35, s9, 0")
            masks()
            A("s_mov_b32 s40, 0xcccccccc"); A("s_mov_b32 s41, 0xcccccccc")
            A("s_mov_b32 s42, 0xaaaaaaaa"); A("s_mov_b32 s43, 0xaaaaaaaa")
            A(f"s_mov_b32 s44, {f32(math.log2(math.e)/math.sqrt(128))}")
            A("v_and_b32 v10, 15, v0"); A("v_lshlrev_b32 v10, 5, v10")
            for r in range(4): A(f"v_mov_b32 v{18+r}, 0")
            A("s_mov_b32 s36, 0")
    stamp(1)
    A("s_barrier")
    for hw in range(4):
        for k in range(2):
            r = TMP + hw*8 + k*4
            A(f"ds_read_b128 v[{r}:{r+3}], v10 offset:{L_Q + hw*512 + k*16}")
    A("s_waitcnt lgkmcnt(4)")
    for e in range(8): A(f"v_add_f32 v{TMP+e}, v{TMP+e}, v{TMP+8+e}")
    A("s_waitcnt lgkmcnt(0)")
    for e in range(8): A(f"v_add_f32 v{TMP+16+e}, v{TMP+16+e}, v{TMP+24+e}")
    for e in range(8): A(f"v_add_f32 v{TMP+e}, v{TMP+e}, v{TMP+16+e}")
    for w in range(4): A(f"v_cvt_pk_bf16_f32 v{2+w}, v{TMP+2*w}, v{TMP+2*w+1}")
    stamp(2)
    dppm = "row_mask:0xf"
    def merges(t, grp):
        o = []
        a = PA + (t & 1); b = PB + ((t >> 1) & 1)
        o.append(f"v_add_f32_dpp v{b}, v{a}, v{a} row_ror:8 {dppm} bank_mask:{'0xc' if t & 1 else '0x3'}")
        if t & 1:
            c = PC + ((t >> 2) & 1)
            if t & 2: o.append(f"v_add_f32_dpp v{c}, v{b}, v{b} row_shr:4 {dppm} bank_mask:0xa")
            else:     o.append(f"v_add_f32_dpp v{c}, v{b}, v{b} row_shl:4 {dppm} bank_mask:0x5")
        if t & 3 == 3:
            c = PC + ((t >> 2) & 1)
            o.append(f"v_add_f32_dpp v{PT + ((t>>2)&1)}, v{c}, v{c} quad_perm:[2,3,0,1] {dppm} bank_mask:0xf")
        if t & 7 == 7:
            d = PD + ((t >> 3) & 1)
            o.append(f"v_cndmask_b32 v{d}, v{PT}, v{PT+1}, s[40:41]")
            o.append(f"v_add_f32_dpp v{d}, v{d}, v{d} quad_perm:[1,0,3,2] {dppm} bank_mask:0xf")
        if t == 15:
            o.append(f"v_cndmask_b32 v{S0+16+grp}, v{PD}, v{PD+1}, s[42:43]")
        return o
    A(".p2align 6")
    A("L_kloop:")
    pend = []
    for i in range(32):
        A(f"s_waitcnt vmcnt({D-1})")
        issue(i + 31)
        if i == 0:
            A("s_cmp_eq_u32 s36, 7"); A("s_cselect_b32 s20, s34, s20"); A("s_cselect_b32 s21, s35, s21")
        r = RING + i*4; a = PA + (i & 1)
        dots = [f"v_dot2_f32_bf16 v{a}, v{r}, v2, 0"] + [f"v_dot2_f32_bf16 v{a}, v{r+k}, v{2+k}, v{a}" for k in (1, 2, 3)]
        seq = []
        for k in range(4):
            seq.append(dots[k])
            if k >= 1 and pend: seq.append(pend.pop(0))
        seq += pend
        for s in seq: A(s)
        pend = merges(i % 16, i // 16)
    for s in pend: A(s)
    for k in range(0, 16, 2): A(f"v_mov_b64 v[{S0+k}:{S0+k+1}], v[{S0+k+2}:{S0+k+3}]")
    A("s_add_u32 s36, s36, 1"); A("s_cmp_lt_u32 s36, 8"); A("s_cbranch_scc1 L_kloop")
    stamp(3)
    A(f"v_max3_f32 v{PA}, v{S0}, v{S0+1}, v{S0+2}")
    A(f"v_max3_f32 v{PA+1}, v{S0+3}, v{S0+4}, v{S0+5}")
    for k in range(6, 14, 4):
        A(f"v_max3_f32 v{PA}, v{PA}, v{S0+k}, v{S0+k+1}")
        A(f"v_max3_f32 v{PA+1}, v{PA+1}, v{S0+k+2}, v{S0+k+3}")
    A(f"v_max3_f32 v{PA}, v{PA}, v{S0+14}, v{S0+15}")
    A(f"v_max_f32 v{PA}, v{PA}, v{PA+1}")
    def xlane(op, x, t):
        for sh in (8, 4, 2, 1): A(f"{op}_dpp v{x}, v{x}, v{x} row_ror:{sh} {dppm} bank_mask:0xf")
        for sw in ("v_permlane16_swap_b32", "v_permlane32_swap_b32"):
            A(f"v_mov_b32 v{t}, v{x}"); A(f"{sw} v{t}, v{x}"); A(f"{op} v{x}, v{x}, v{t}")
    xlane("v_max_f32", PA, PA+1)
    A(f"v_mul_f32 v{PB}, s44, v{PA}")
    for k in range(16): A(f"v_fma_f32 v{S0+k}, v{S0+k}, s44, -v{PB}")
    for k in range(16): A(f"v_exp_f32 v{S0+k}, v{S0+k}")
    A(f"v_add_f32 v{PB+1}, v{S0}, v{S0+1}"); A(f"v_add_f32 v{PA}, v{S0+2}, v{S0+3}")
    for k in range(4, 16, 2):
        A(f"v_add_f32 v{PB+1}, v{PB+1}, v{S0+k}"); A(f"v_add_f32 v{PA}, v{PA}, v{S0+k+1}")
    A(f"v_add_f32 v{PB+1}, v{PB+1}, v{PA}")
    for k in range(16): A(f"v_cvt_pk_bf16_f32 v{S0+k}, v{S0+k}, v{S0+k}")
    xlane("v_add_f32", PB+1, PA)
    A("s_lshl_b32 s33, s3, 3"); A(f"v_mov_b32 v{PA}, s33")
    A("s_mov_b64 exec, 1")
    A(f"ds_write_b64 v{PA}, v[{PB}:{PB+1}] offset:{L_STAT}")
    A("s_mov_b64 exec, -1")
    def frag(fb, p, lane):
        for w in range(4): A(f"v_and_b32_dpp v{fb+w}, v{p}, v{6+w} row_newbcast:{lane} {dppm} bank_mask:0xf")
    frag(10, S0, brev4(0))
    stamp(4)
    def vbody(depth, last):
        for i in range(32):
            if not last or i == 0:
                A(f"s_waitcnt vmcnt({depth-1})"); issue(i + 31)
            elif 31 - i < depth:
                A(f"s_waitcnt vmcnt({31-i})")
            cur = 10 + 4*(i & 1); nxt = 10 + 4*((i+1) & 1)
            if not (last and i == 31): frag(nxt, S0 + (i+1)//16, brev4((i+1) % 16))
            r = RING + i*4
            A(f"v_mfma_f32_16x16x32_bf16 v[18:21], v[{cur}:{cur+3}], v[{r}:{r+3}], v[18:21]")
        if not last:
            for k in range(0, 14, 2): A(f"v_mov_b64 v[{S0+k}:{S0+k+1}], v[{S0+k+2}:{S0+k+3}]")
    nloop = 7 if Dend == D else 6
    A("s_mov_b32 s36, 0")
    A(".p2align 6")
    A("L_vloop:")
    vbody(D, False)
    A("s_add_u32 s36, s36, 1"); A(f"s_cmp_lt_u32 s36, {nloop}"); A("s_cbranch_scc1 L_vloop")
    if Dend != D: vbody(Dend, False)
    stamp(5)
    A(f"v_and_b32 v{PA}, 15, v0"); A(f"v_lshlrev_b32 v{PA}, 5, v{PA}")
    A(f"v_and_b32 v{PA+1}, 16, v0"); A("s_lshl_b32 s33, s3, 9"); A(f"v_add3_u32 v{PA}, v{PA}, v{PA+1}, s33")
    vbody(Dend, True)
    A("s_mov_b32 exec_hi, 0")
    A(f"ds_write_b128 v{PA}, v[18:21] offset:{L_O}")
    A("s_waitcnt lgkmcnt(0)")
    stamp(6)
    A("s_barrier")
    stamp_flush()
    A("s_endpgm")

    W0 = 96
    A(".p2align 6")
    A("L_helper:")
    A("s_sub_u32 s33, s3, 4                  ; hw")
    A("v_lshrrev_b32 v1, 4, v0               ; g"); A("v_and_b32 v2, 15, v0   ; i")
    A("v_lshl_add_u32 v3, v2, 2, v1"); A("v_lshlrev_b32 v3, 1, v3     ; (4i+g)*2")
    A("s_mul_i32 s34, s28, 1280"); A("s_mul_i32 s35, s33, 320"); A("s_add_u32 s34, s34, s35")
    A("v_lshlrev_b32 v4, 13, v1"); A("v_lshl_add_u32 v4, v2, 4, v4   ; g*8192+i*16")
    A("s_lshl_b32 s35, s29, 8"); A("s_mul_i32 s36, s33, 1310720"); A("s_add_u32 s35, s35, s36")
    A("s_mov_b32 s38, 2560"); A("s_mov_b32 s39, 0x20000")
    A("s_mov_b32 s42, 1302784"); A("s_mov_b32 s43, 0x20000")
    A("s_mov_b32 s48, 0")
    A("s_waitcnt lgkmcnt(0)")
    A("s_mov_b32 s36, s4"); A("s_mov_b32 s37, s5")
    A("s_add_u32 s40, s10, s35"); A("s_addc_u32 s41, s11, 0")
    for u in range(3): A(f"buffer_load_ushort v{22+u}, v3, s[36:39], s34 offen offset:{u*128}")
    def qproc(t):
        fb = 10 + 4*(t & 1)
        frag(fb, 22 + t//16, t % 16)
        r = W0 + t*4
        A(f"v_mfma_f32_16x16x32_bf16 v[18:21], v[{fb}:{fb+3}], v[{r}:{r+3}], {'0' if t == 0 else 'v[18:21]'}")
    Dq_ = min(Dq, 40)
    for t in range(40):
        if t >= Dq_: A(f"s_waitcnt vmcnt({Dq_-1})")
        r = W0 + t*4
        A(f"buffer_load_dwordx4 v[{r}:{r+3}], v4, s[40:43], s48 offen{pq}")
        A("s_add_u32 s48, s48, 0x8000")
        if t == Dq_ - 1:
            masks()
            A("v_and_b32 v5, 16, v0"); A("v_lshl_add_u32 v5, v2, 5, v5   ; n*32+G*16")
            A("s_lshl_b32 s49, s33, 9"); A("v_add_u32 v26, s49, v5")
            A("v_mov_b32 v28, -1"); A("v_mov_b32 v29, -1"); A("v_mov_b32 v30, -1"); A("v_mov_b32 v31, -1")
            A("v_lshlrev_b32 v27, 3, v0")
            A("s_mov_b64 exec, 15"); A(f"ds_write_b64 v27, v[28:29] offset:{L_STAT}"); A("s_mov_b64 exec, -1")
            A(f"s_waitcnt vmcnt({Dq_})")
            for u in range(3): A(f"v_lshl_or_b32 v{22+u}, v{22+u}, 16, v{22+u}")
        if t >= Dq_: qproc(t - Dq_)
    for t in range(40 - Dq_, 40):
        A(f"s_waitcnt vmcnt({39-t})"); qproc(t)
    A("s_mov_b32 exec_hi, 0")
    A(f"ds_write_b128 v26, v[18:21] offset:{L_Q}")
    A("s_mov_b64 exec, -1")
    A("s_waitcnt lgkmcnt(0)")
    stamp(1)
    A("s_barrier                             ; B1")
    A("s_mul_i32 s35, s31, 2560"); A(f"s_add_u32 s35, s35, {WS_REC}")
    A("s_add_u32 s44, s18, s35"); A("s_addc_u32 s45, s19, 0"); A("s_mov_b32 s46, 2560"); A("s_mov_b32 s47, 0x20000")
    A("s_lshl_b32 s35, s29, 2"); A("s_add_u32 s35, s35, s33"); A("s_mul_i32 s35, s35, 40960   ; (h*128+32*hw)*1280")
    A("s_add_u32 s40, s12, s35"); A("s_addc_u32 s41, s13, 0"); A("s_mov_b32 s42, 40960"); A("s_mov_b32 s43, 0x20000")
    A("v_mul_u32_u24 v4, 1280, v1"); A("v_lshl_add_u32 v4, v2, 4, v4   ; g*1280+i*16")
    A("v_lshlrev_b32 v32, 4, v0              ; lane*16")
    A("s_cmp_lg_u32 s33, 0"); A("s_cbranch_scc1 L_h_noclear")
    for k in range(3):
        A(f"buffer_store_dwordx4 v[28:31], v32, s[44:47], 0 offen offset:{k*1024} sc1")
    A("L_h_noclear:")
    A("s_mov_b32 s48, 0")
    for t in range(40):
        rg, cs = divmod(t, 5)
        if t >= Dw: A(f"s_waitcnt vmcnt({Dw-1})")
        r = W0 + t*4
        A(f"buffer_load_dwordx4 v[{r}:{r+3}], v4, s[40:43], s48 offen offset:{cs*256}{po}")
        if cs == 4: A("s_add_u32 s48, s48, 5120")
    A("s_lshl_b32 s49, s33, 10"); A("v_add_u32 v32, s49, v32   ; (hw*64+lane)*16")
    A("v_and_b32 v33, 7, v2"); A("v_lshl_add_u32 v33, v33, 2, v1"); A("s_lshl_b32 s49, s33, 5")
    A("v_add_lshl_u32 v33, v33, s49, 2       ; (32hw+4(i&7)+g)*4")
    A("s_mul_i32 s49, s33, 2560"); A("v_add_u32 v34, s49, v5")
    A("v_mov_b32 v35, 0")
    A("s_waitcnt vmcnt(0)")
    stamp(2)
    A("s_cmp_lg_u32 s33, 0"); A("s_cbranch_scc1 L_h_b2")
    A("s_mov_b64 exec, 15")
    A(f"s_mov_b32 s50, {SPIN}")
    A("L_h_pollstat:")
    A(f"ds_read_b64 v[36:37], v27 offset:{L_STAT}")
    A("s_waitcnt lgkmcnt(0)")
    A("v_cmp_eq_u32 vcc, -1, v37")
    A("s_cbranch_vccz L_h_gotstat")
    A("s_sleep 8")
    A("s_sub_u32 s50, s50, 1"); A("s_cmp_lg_u32 s50, 0"); A("s_cbranch_scc1 L_h_pollstat")
    A("L_h_gotstat:")
    A("s_lshl_b32 s49, s31, 5"); A("v_add_u32 v38, s49, v27")
    A(f"global_store_dwordx2 v38, v[36:37], s[18:19] offset:{WS_STAT} sc1")
    A("s_lshl_b32 s49, s30, 2"); A("v_mov_b32 v39, s49"); A("v_mov_b32 v40, 1")
    A("s_waitcnt vmcnt(0)")
    A("s_mov_b64 exec, 1")
    A("global_atomic_add v39, v40, s[16:17] sc1")
    A("s_mov_b64 exec, -1")
    A("v_lshlrev_b32 v39, 2, v0")
    A(f"s_mov_b32 s50, {SPIN}")
    A("L_h_polldbg:")
    A("global_load_dword v40, v39, s[16:17] sc1")
    A("s_waitcnt vmcnt(0)")
    A("v_cmp_ne_u32 vcc, 4, v40")
    A("s_cbranch_vccz L_h_gotdbg")
    A("s_sleep 32")
    A("s_sub_u32 s50, s50, 1"); A("s_cmp_lg_u32 s50, 0"); A("s_cbranch_scc1 L_h_polldbg")
    A("L_h_gotdbg:")
    A("s_lshl_b32 s49, s30, 7"); A("v_lshl_add_u32 v38, v2, 3, s49   ; bh*128 + i*8")
    A(f"global_load_dwordx2 v[36:37], v38, s[18:19] offset:{WS_STAT} sc1")
    A("s_waitcnt vmcnt(0)")
    A("v_mov_b32 v38, v36")
    for sh in (8, 4, 2, 1): A(f"v_max_f32_dpp v38, v38, v38 row_ror:{sh} {dppm} bank_mask:0xf")
    A("v_sub_f32 v36, v36, v38"); A("v_exp_f32 v36, v36")
    A("v_mul_f32 v37, v37, v36")
    for sh in (8, 4, 2, 1): A(f"v_add_f32_dpp v37, v37, v37 row_ror:{sh} {dppm} bank_mask:0xf")
    A("v_rcp_f32 v38, v37")
    A("v_fma_f32 v39, -v37, v38, 1.0"); A("v_fma_f32 v38, v39, v38, v38")
    A("v_mul_f32 v36, v36, v38")
    A("s_lshl_b32 s49, s27, 2"); A("s_lshl_b64 exec, 15, s49")
    A("v_and_b32 v38, 3, v0"); A("v_lshlrev_b32 v38, 2, v38")
    A(f"ds_write_b32 v38, v36 offset:{L_FAC}")
    A("s_mov_b64 exec, -1")
    A("s_waitcnt lgkmcnt(0)")
    stamp(3)
    A("L_h_b2:")
    A("s_barrier                             ; B2")
    stamp(4)
    A(f"ds_read_b128 v[36:39], v35 offset:{L_FAC}")
    for w in range(4): A(f"ds_read_b32 v{40+w}, v33 offset:{L_O + w*512}")
    A("s_waitcnt lgkmcnt(0)")
    A("v_mul_f32 v40, v36, v40"); A("v_mul_f32 v42, v38, v42")
    A("v_fmac_f32 v40, v37, v41"); A("v_fmac_f32 v42, v39, v43")
    A("v_add_f32 v40, v40, v42")
    A("v_cvt_pk_bf16_f32 v40, v40, v40")
    Y0 = 64
    frag(10, 40, 0)
    for rg in range(8):
        cur = 10 + 4*(rg & 1); nxt = 10 + 4*((rg+1) & 1)
        for cs in range(5):
            r = W0 + (rg*5+cs)*4; y = Y0 + cs*4
            A(f"v_mfma_f32_16x16x32_bf16 v[{y}:{y+3}], v[{cur}:{cur+3}], v[{r}:{r+3}], {'0' if rg == 0 else f'v[{y}:{y+3}]'}")
            if rg < 7 and cs < 4:
                A(f"v_and_b32_dpp v{nxt+cs}, v40, v{6+cs} row_newbcast:{rg+1} {dppm} bank_mask:0xf")
    A("s_mov_b32 exec_hi, 0")
    for cs in range(5): A(f"ds_write_b128 v34, v[{Y0+cs*4}:{Y0+cs*4+3}] offset:{L_Y + cs*512}")
    A("s_mov_b64 exec, -1")
    A("s_waitcnt lgkmcnt(0)")
    stamp(5)
    A("s_barrier")
    A("s_cmp_eq_u32 s33, 3"); A("s_cbranch_scc1 L_consumer")
    for w in range(4): A(f"ds_read_b128 v[{64+w*4}:{67+w*4}], v32 offset:{L_Y + w*2560}")
    A("s_waitcnt lgkmcnt(2)")
    for e in range(4): A(f"v_add_f32 v{64+e}, v{64+e}, v{68+e}")
    A("s_waitcnt lgkmcnt(0)")
    for e in range(4): A(f"v_add_f32 v{72+e}, v{72+e}, v{76+e}")
    for e in range(4): A(f"v_add_f32 v{64+e}, v{64+e}, v{72+e}")
    A("buffer_store_dwordx4 v[64:67], v32, s[44:47], 0 offen sc1")
    if stamps:
        A("s_waitcnt vmcnt(0)"); stamp(6)
    stamp_flush()
    A("s_endpgm")
    A("L_consumer:")
    A("s_cmp_ge_u32 s2, 160"); A("s_cbranch_scc1 L_cons_end")
    A("s_cmp_ge_u32 s2, 80"); A("s_cselect_b32 s49, 1, 0   ; batch")
    A("s_mul_i32 s50, s49, 80"); A("s_sub_u32 s50, s2, s50")
    A(f"s_mul_i32 s51, s49, {128*2560}"); A(f"s_add_u32 s51, s51, {WS_REC}"); A("s_lshl_b32 s52, s50, 5"); A("s_add_u32 s51, s51, s52")
    A("s_add_u32 s44, s18, s51"); A("s_addc_u32 s45, s19, 0"); A(f"s_mov_b32 s46, {128*2560}"); A("s_mov_b32 s47, 0x20000")
    A("v_lshrrev_b32 v36, 1, v0"); A("v_mul_u32_u24 v36, 2560, v36"); A("v_and_b32 v37, 1, v0"); A("v_lshl_add_u32 v36, v37, 4, v36")
    for u in range(1, 4): A(f"s_mov_b32 s{52+u}, {u*32*2560}")
    for u in range(4): A(f"s_mov_b64 s[{60+2*u}:{61+2*u}], -1")
    A(f"s_mov_b32 s50, {SPIN}")
    A("L_cons_poll:")
    for u in range(4):
        A(f"s_mov_b64 exec, s[{60+2*u}:{61+2*u}]")
        A(f"s_cbranch_execz L_cons_skip{u}")
        A(f"buffer_load_dwordx4 v[{64+4*u}:{67+4*u}], v36, s[44:47], {'0' if u == 0 else f's{52+u}'} offen sc1")
        A(f"L_cons_skip{u}:")
    A("s_mov_b64 exec, -1")
    A("s_waitcnt vmcnt(0)")
    for u in range(4):
        r = 64 + 4*u
        A(f"v_max3_u32 v{80+u}, v{r}, v{r+1}, v{r+2}")
    for u in range(4):
        A(f"v_max_u32 v{80+u}, v{80+u}, v{67+4*u}")
    for u in range(4):
        A(f"v_cmp_eq_u32 s[{60+2*u}:{61+2*u}], -1, v{80+u}")
    A("s_or_b64 s[68:69], s[60:61], s[62:63]"); A("s_or_b64 s[70:71], s[64:65], s[66:67]")
    A("s_or_b64 s[68:69], s[68:69], s[70:71]")
    A("s_cbranch_scc0 L_cons_got")
    A("s_sub_u32 s50, s50, 1"); A("s_cmp_lg_u32 s50, 0"); A("s_cbranch_scc1 L_cons_poll")
    A("L_cons_got:")
    stamp(6)
    for e in range(4): A(f"v_add_f32 v{64+e}, v{64+e}, v{68+e}")
    for e in range(4): A(f"v_add_f32 v{72+e}, v{72+e}, v{76+e}")
    for e in range(4): A(f"v_add_f32 v{64+e}, v{64+e}, v{72+e}")
    A("v_permlane32_swap_b32 v64, v65"); A("v_permlane32_swap_b32 v66, v67")
    A("v_add_f32 v64, v64, v65"); A("v_add_f32 v66, v66, v67")
    A("v_permlane16_swap_b32 v64, v66")
    A("v_add_f32 v64, v64, v66")
    A(f"v_add_f32_dpp v64, v64, v64 quad_perm:[2,3,0,1] {dppm} bank_mask:0xf")
    A(f"v_add_f32_dpp v64, v64, v64 row_ror:4 {dppm} bank_mask:0xf")
    A(f"v_add_f32_dpp v64, v64, v64 row_ror:8 {dppm} bank_mask:0xf")
    A("v_cvt_pk_bf16_f32 v64, v64, v64")
    A("v_lshrrev_b32 v38, 5, v0"); A("v_bfe_u32 v39, v0, 4, 1"); A("v_lshl_add_u32 v38, v39, 1, v38")
    A("v_lshl_add_u32 v38, v37, 2, v38"); A("s_lshl_b32 s52, s2, 3"); A("v_add_lshl_u32 v38, v38, s52, 1")
    A("s_mov_b32 exec_lo, 0x00030003"); A("s_mov_b32 exec_hi, 0x00030003")
    A("global_store_short v38, v64, s[14:15]")
    if stamps:
        A("s_waitcnt vmcnt(0)"); stamp(7)
    A("L_cons_end:")
    stamp_flush()
    A("L_end:")
    A("s_endpgm")
    A('.section .rodata,"a"'); A(".p2align 6"); A(f".amdhsa_kernel {NAME}")
    for s_ in ("next_free_vgpr 256", "next_free_sgpr 96", "accum_offset 256", "group_segment_fixed_size 0", "kernarg_size 64",
               "user_sgpr_count 2", "user_sgpr_kernarg_segment_ptr 1", "system_sgpr_workgroup_id_x 1"):
        L.append("  .amdhsa_" + s_)
    A(".end_amdhsa_kernel")
    out, n = pad(L, verbose)
    return HEADER + "\n".join(out) + "\n"

if __name__ == "__main__":
    kw = {}
    for a in sys.argv[2:]:
        k, v = a.split("=")
        kw[k] = int(v) if v.lstrip("-").isdigit() else v
    open(sys.argv[1], "w").write(gen(**kw))
```

```python
import sys, math, struct
sys.path.insert(0, "gen")
from hazard import pad
NAME = "standalone__mha_block_cached__decode_kernel"
HEADER = open("standalone__mha_block_cached__decode.s.ref").read().split("; Override launch")[0] if True else ""

def f32(x): return "0x%08x" % struct.unpack("<I", struct.pack("<f", x))[0]
def brev4(t): return int("{:04b}".format(t)[::-1], 2)

L_Q, L_STAT, L_FAC, L_O, L_Y, L_TOT = 0, 2048, 2080, 4096, 8192, 19456
WS_STAT, WS_MBOX, WS_REC, WS_STAMP = 0, 16384, 65536, 1 << 24
SPIN = 1 << 20

def gen(D=5, Dend=5, Dq=8, Dw=2, rot=5, polkv="nt", polq="nt", polo="nt", stamps=False, verbose=False, prio=0):
    L = []
    def A(s): L.append(("" if s.endswith(":") or s.startswith((".", ";")) else "    ") + s)
    pk = " " + polkv if polkv else ""
    pq = " " + polq if polq else ""
    po = " " + polo if polo else ""
    def stamp(k):
        if stamps:
            A("s_memrealtime s[90:91]"); A("s_waitcnt lgkmcnt(0)"); A(f"v_writelane_b32 v63, s90, {k}")
    def stamp_flush():
        if stamps:
            A("s_mov_b64 exec, -1")
            A("s_getreg_b32 s92, hwreg(HW_REG_XCC_ID)"); A("v_writelane_b32 v63, s92, 63")
            A("s_lshl_b32 s92, s2, 3"); A("s_add_u32 s92, s92, s3"); A("s_lshl_b32 s92, s92, 8"); A(f"s_add_u32 s92, s92, {WS_STAMP}")
            A("v_lshlrev_b32 v62, 2, v0"); A("v_add_u32 v62, s92, v62")
            A("global_store_dword v62, v63, s[18:19]")
    A(f"; @launch grid=(256,1,1) block=(512,1,1) lds={L_TOT}")
    A('.amdgcn_target "amdgcn-amd-amdhsa--gfx950"')
    A(".text"); A(f".globl {NAME}"); A(".p2align 8"); A(f".type {NAME},@function"); A(f"{NAME}:")
    A("s_cmp_ge_u32 s2, 256"); A("s_cbranch_scc1 L_end")
    A("s_load_dwordx16 s[4:19], s[0:1], 0")
    A("v_lshrrev_b32 v1, 6, v0")
    A("s_and_b32 s24, s2, 7"); A("s_lshr_b32 s25, s2, 3")
    A("v_readfirstlane_b32 s3, v1")
    A("v_and_b32 v0, 63, v0                 ; lane")
    A("s_and_b32 s26, s25, 3"); A("s_bfe_u32 s27, s25, 0x20002   ; split"); A("s_lshr_b32 s28, s25, 4   ; b")
    A("s_lshl_b32 s24, s24, 2"); A("s_add_u32 s29, s24, s26   ; h")
    A("s_lshl_b32 s30, s28, 5"); A("s_add_u32 s30, s30, s29   ; bh")
    A("s_lshl_b32 s31, s30, 2"); A("s_add_u32 s31, s31, s27")
    if stamps:
        A("v_mov_b32 v63, 0"); stamp(0)
    A("s_cmp_ge_u32 s3, 4"); A("s_cbranch_scc1 L_helper")

    def masks():
        A("v_and_b32 v10, 15, v0")
        A("v_and_b32 v11, 1, v0"); A("v_lshlrev_b32 v11, 4, v11")
        A("v_mov_b32 v12, 0xffff"); A("v_lshlrev_b32 v11, v11, v12")
        A("v_lshrrev_b32 v10, 1, v10")
        for w in range(4):
            A(f"v_cmp_eq_u32 vcc, {w}, v10"); A(f"v_cndmask_b32 v{6+w}, 0, v11, vcc")
    RING = 128
    S0 = 22
    PA, PB, PC, PD, PT = 40, 42, 44, 46, 48
    TMP = 64
    if prio: A(f"s_setprio {prio}")
    A("v_lshlrev_b32 v1, 4, v0"); A("s_lshl_b32 s33, s3, 12"); A("v_add_u32 v1, s33, v1")
    A(f"s_mul_i32 s32, s2, {rot*16384}"); A("s_and_b32 s32, s32, 0xfffff")
    A("s_lshl_b32 s33, s31, 20")
    A("s_mov_b32 s22, 0x100000"); A("s_mov_b32 s23, 0x20000")
    A("s_waitcnt lgkmcnt(0)")
    A("s_add_u32 s20, s6, s33"); A("s_addc_u32 s21, s7, 0")
    def issue(n):
        r = RING + (n % 32) * 4
        A(f"buffer_load_dwordx4 v[{r}:{r+3}], v1, s[20:23], s32 offen offset:{(n%4)*1024}{pk}")
        if n % 4 == 3:
            A("s_add_u32 s32, s32, 0x4000"); A("s_and_b32 s32, s32, 0xfffff")
    for n in range(31):
        if n >= D: A(f"s_waitcnt vmcnt({D-1})")
        issue(n)
        if n == D - 1:
            A("s_add_u32 s34, s8, s33"); A("s_addc_u32 s35, s9, 0")
            masks()
            A("s_mov_b32 s40, 0xcccccccc"); A("s_mov_b32 s41, 0xcccccccc")
            A("s_mov_b32 s42, 0xaaaaaaaa"); A("s_mov_b32 s43, 0xaaaaaaaa")
            A(f"s_mov_b32 s44, {f32(math.log2(math.e)/math.sqrt(128))}")
            A("v_and_b32 v10, 15, v0"); A("v_lshlrev_b32 v10, 5, v10")
            for r in range(4): A(f"v_mov_b32 v{18+r}, 0")
            A("s_mov_b32 s36, 0")
    stamp(1)
    A("s_barrier")
    for hw in range(4):
        for k in range(2):
            r = TMP + hw*8 + k*4
            A(f"ds_read_b128 v[{r}:{r+3}], v10 offset:{L_Q + hw*512 + k*16}")
    A("s_waitcnt lgkmcnt(4)")
    for e in range(8): A(f"v_add_f32 v{TMP+e}, v{TMP+e}, v{TMP+8+e}")
    A("s_waitcnt lgkmcnt(0)")
    for e in range(8): A(f"v_add_f32 v{TMP+16+e}, v{TMP+16+e}, v{TMP+24+e}")
    for e in range(8): A(f"v_add_f32 v{TMP+e}, v{TMP+e}, v{TMP+16+e}")
    for w in range(4): A(f"v_cvt_pk_bf16_f32 v{2+w}, v{TMP+2*w}, v{TMP+2*w+1}")
    stamp(2)
    dppm = "row_mask:0xf"
    def merges(t, grp):
        o = []
        a = PA + (t & 1); b = PB + ((t >> 1) & 1)
        o.append(f"v_add_f32_dpp v{b}, v{a}, v{a} row_ror:8 {dppm} bank_mask:{'0xc' if t & 1 else '0x3'}")
        if t & 1:
            c = PC + ((t >> 2) & 1)
            if t & 2: o.append(f"v_add_f32_dpp v{c}, v{b}, v{b} row_shr:4 {dppm} bank_mask:0xa")
            else:     o.append(f"v_add_f32_dpp v{c}, v{b}, v{b} row_shl:4 {dppm} bank_mask:0x5")
        if t & 3 == 3:
            c = PC + ((t >> 2) & 1)
            o.append(f"v_add_f32_dpp v{PT + ((t>>2)&1)}, v{c}, v{c} quad_perm:[2,3,0,1] {dppm} bank_mask:0xf")
        if t & 7 == 7:
            d = PD + ((t >> 3) & 1)
            o.append(f"v_cndmask_b32 v{d}, v{PT}, v{PT+1}, s[40:41]")
            o.append(f"v_add_f32_dpp v{d}, v{d}, v{d} quad_perm:[1,0,3,2] {dppm} bank_mask:0xf")
        if t == 15:
            o.append(f"v_cndmask_b32 v{S0+16+grp}, v{PD}, v{PD+1}, s[42:43]")
        return o
    A(".p2align 6")
    A("L_kloop:")
    pend = []
    for i in range(32):
        A(f"s_waitcnt vmcnt({D-1})")
        issue(i + 31)
        if i == 0:
            A("s_cmp_eq_u32 s36, 7"); A("s_cselect_b32 s20, s34, s20"); A("s_cselect_b32 s21, s35, s21")
        r = RING + i*4; a = PA + (i & 1)
        dots = [f"v_dot2_f32_bf16 v{a}, v{r}, v2, 0"] + [f"v_dot2_f32_bf16 v{a}, v{r+k}, v{2+k}, v{a}" for k in (1, 2, 3)]
        seq = []
        for k in range(4):
            seq.append(dots[k])
            if k >= 1 and pend: seq.append(pend.pop(0))
        seq += pend
        for s in seq: A(s)
        pend = merges(i % 16, i // 16)
    for s in pend: A(s)
    for k in range(0, 16, 2): A(f"v_mov_b64 v[{S0+k}:{S0+k+1}], v[{S0+k+2}:{S0+k+3}]")
    A("s_add_u32 s36, s36, 1"); A("s_cmp_lt_u32 s36, 8"); A("s_cbranch_scc1 L_kloop")
    stamp(3)
    A(f"v_max3_f32 v{PA}, v{S0}, v{S0+1}, v{S0+2}")
    A(f"v_max3_f32 v{PA+1}, v{S0+3}, v{S0+4}, v{S0+5}")
    for k in range(6, 14, 4):
        A(f"v_max3_f32 v{PA}, v{PA}, v{S0+k}, v{S0+k+1}")
        A(f"v_max3_f32 v{PA+1}, v{PA+1}, v{S0+k+2}, v{S0+k+3}")
    A(f"v_max3_f32 v{PA}, v{PA}, v{S0+14}, v{S0+15}")
    A(f"v_max_f32 v{PA}, v{PA}, v{PA+1}")
    def xlane(op, x, t):
        for sh in (8, 4, 2, 1): A(f"{op}_dpp v{x}, v{x}, v{x} row_ror:{sh} {dppm} bank_mask:0xf")
        for sw in ("v_permlane16_swap_b32", "v_permlane32_swap_b32"):
            A(f"v_mov_b32 v{t}, v{x}"); A(f"{sw} v{t}, v{x}"); A(f"{op} v{x}, v{x}, v{t}")
    xlane("v_max_f32", PA, PA+1)
    A(f"v_mul_f32 v{PB}, s44, v{PA}")
    for k in range(16): A(f"v_fma_f32 v{S0+k}, v{S0+k}, s44, -v{PB}")
    for k in range(16): A(f"v_exp_f32 v{S0+k}, v{S0+k}")
    A(f"v_add_f32 v{PB+1}, v{S0}, v{S0+1}"); A(f"v_add_f32 v{PA}, v{S0+2}, v{S0+3}")
    for k in range(4, 16, 2):
        A(f"v_add_f32 v{PB+1}, v{PB+1}, v{S0+k}"); A(f"v_add_f32 v{PA}, v{PA}, v{S0+k+1}")
    A(f"v_add_f32 v{PB+1}, v{PB+1}, v{PA}")
    for k in range(16): A(f"v_cvt_pk_bf16_f32 v{S0+k}, v{S0+k}, v{S0+k}")
    xlane("v_add_f32", PB+1, PA)
    A("s_lshl_b32 s33, s3, 3"); A(f"v_mov_b32 v{PA}, s33")
    A("s_mov_b64 exec, 1")
    A(f"ds_write_b64 v{PA}, v[{PB}:{PB+1}] offset:{L_STAT}")
    A("s_mov_b64 exec, -1")
    def frag(fb, p, lane):
        for w in range(4): A(f"v_and_b32_dpp v{fb+w}, v{p}, v{6+w} row_newbcast:{lane} {dppm} bank_mask:0xf")
    frag(10, S0, brev4(0))
    stamp(4)
    def vbody(depth, last):
        for i in range(32):
            if not last or i == 0:
                A(f"s_waitcnt vmcnt({depth-1})"); issue(i + 31)
            elif 31 - i < depth:
                A(f"s_waitcnt vmcnt({31-i})")
            cur = 10 + 4*(i & 1); nxt = 10 + 4*((i+1) & 1)
            if not (last and i == 31): frag(nxt, S0 + (i+1)//16, brev4((i+1) % 16))
            r = RING + i*4
            A(f"v_mfma_f32_16x16x32_bf16 v[18:21], v[{cur}:{cur+3}], v[{r}:{r+3}], v[18:21]")
        if not last:
            for k in range(0, 14, 2): A(f"v_mov_b64 v[{S0+k}:{S0+k+1}], v[{S0+k+2}:{S0+k+3}]")
    nloop = 7 if Dend == D else 6
    A("s_mov_b32 s36, 0")
    A(".p2align 6")
    A("L_vloop:")
    vbody(D, False)
    A("s_add_u32 s36, s36, 1"); A(f"s_cmp_lt_u32 s36, {nloop}"); A("s_cbranch_scc1 L_vloop")
    if Dend != D: vbody(Dend, False)
    stamp(5)
    A(f"v_and_b32 v{PA}, 15, v0"); A(f"v_lshlrev_b32 v{PA}, 5, v{PA}")
    A(f"v_and_b32 v{PA+1}, 16, v0"); A("s_lshl_b32 s33, s3, 9"); A(f"v_add3_u32 v{PA}, v{PA}, v{PA+1}, s33")
    vbody(Dend, True)
    A("s_mov_b32 exec_hi, 0")
    A(f"ds_write_b128 v{PA}, v[18:21] offset:{L_O}")
    A("s_waitcnt lgkmcnt(0)")
    stamp(6)
    A("s_barrier")
    stamp_flush()
    A("s_endpgm")

    W0 = 96
    A(".p2align 6")
    A("L_helper:")
    A("s_sub_u32 s33, s3, 4                  ; hw")
    A("v_lshrrev_b32 v1, 4, v0               ; g"); A("v_and_b32 v2, 15, v0   ; i")
    A("v_lshl_add_u32 v3, v2, 2, v1"); A("v_lshlrev_b32 v3, 1, v3     ; (4i+g)*2")
    A("s_mul_i32 s34, s28, 1280"); A("s_mul_i32 s35, s33, 320"); A("s_add_u32 s34, s34, s35")
    A("v_lshlrev_b32 v4, 13, v1"); A("v_lshl_add_u32 v4, v2, 4, v4   ; g*8192+i*16")
    A("s_lshl_b32 s35, s29, 8"); A("s_mul_i32 s36, s33, 1310720"); A("s_add_u32 s35, s35, s36")
    A("s_mov_b32 s38, 2560"); A("s_mov_b32 s39, 0x20000")
    A("s_mov_b32 s42, 1302784"); A("s_mov_b32 s43, 0x20000")
    A("s_mov_b32 s48, 0")
    A("s_waitcnt lgkmcnt(0)")
    A("s_mov_b32 s36, s4"); A("s_mov_b32 s37, s5")
    A("s_add_u32 s40, s10, s35"); A("s_addc_u32 s41, s11, 0")
    for u in range(3): A(f"buffer_load_ushort v{22+u}, v3, s[36:39], s34 offen offset:{u*128}")
    def qproc(t):
        fb = 10 + 4*(t & 1)
        frag(fb, 22 + t//16, t % 16)
        r = W0 + t*4
        A(f"v_mfma_f32_16x16x32_bf16 v[18:21], v[{fb}:{fb+3}], v[{r}:{r+3}], {'0' if t == 0 else 'v[18:21]'}")
    Dq_ = min(Dq, 40)
    for t in range(40):
        if t >= Dq_: A(f"s_waitcnt vmcnt({Dq_-1})")
        r = W0 + t*4
        A(f"buffer_load_dwordx4 v[{r}:{r+3}], v4, s[40:43], s48 offen{pq}")
        A("s_add_u32 s48, s48, 0x8000")
        if t == Dq_ - 1:
            masks()
            A("v_and_b32 v5, 16, v0"); A("v_lshl_add_u32 v5, v2, 5, v5   ; n*32+G*16")
            A("s_lshl_b32 s49, s33, 9"); A("v_add_u32 v26, s49, v5")
            A("v_mov_b32 v28, -1"); A("v_mov_b32 v29, -1"); A("v_mov_b32 v30, -1"); A("v_mov_b32 v31, -1")
            A("v_lshlrev_b32 v27, 3, v0")
            A("s_mov_b64 exec, 15"); A(f"ds_write_b64 v27, v[28:29] offset:{L_STAT}"); A("s_mov_b64 exec, -1")
            A(f"s_waitcnt vmcnt({Dq_})")
            for u in range(3): A(f"v_lshl_or_b32 v{22+u}, v{22+u}, 16, v{22+u}")
        if t >= Dq_: qproc(t - Dq_)
    for t in range(40 - Dq_, 40):
        A(f"s_waitcnt vmcnt({39-t})"); qproc(t)
    A("s_mov_b32 exec_hi, 0")
    A(f"ds_write_b128 v26, v[18:21] offset:{L_Q}")
    A("s_mov_b64 exec, -1")
    A("s_waitcnt lgkmcnt(0)")
    stamp(1)
    A("s_barrier                             ; B1")
    A("s_mul_i32 s35, s31, 2560"); A(f"s_add_u32 s35, s35, {WS_REC}")
    A("s_add_u32 s44, s18, s35"); A("s_addc_u32 s45, s19, 0"); A("s_mov_b32 s46, 2560"); A("s_mov_b32 s47, 0x20000")
    A("s_lshl_b32 s35, s29, 2"); A("s_add_u32 s35, s35, s33"); A("s_mul_i32 s35, s35, 40960   ; (h*128+32*hw)*1280")
    A("s_add_u32 s40, s12, s35"); A("s_addc_u32 s41, s13, 0"); A("s_mov_b32 s42, 40960"); A("s_mov_b32 s43, 0x20000")
    A("v_mul_u32_u24 v4, 1280, v1"); A("v_lshl_add_u32 v4, v2, 4, v4   ; g*1280+i*16")
    A("v_lshlrev_b32 v32, 4, v0              ; lane*16")
    A("s_lshl_b32 s49, s31, 7"); A(f"s_add_u32 s49, s49, {WS_MBOX}"); A("v_mov_b32 v44, s49")
    A("s_cmp_lg_u32 s33, 0"); A("s_cbranch_scc1 L_h_noclear")
    for k in range(3):
        A(f"buffer_store_dwordx4 v[28:31], v32, s[44:47], 0 offen offset:{k*1024} sc1")
    A("s_mov_b64 exec, 1"); A("global_store_dword v44, v28, s[18:19] sc1"); A("s_mov_b64 exec, -1")
    A("L_h_noclear:")
    A("s_mov_b32 s48, 0")
    for t in range(40):
        rg, cs = divmod(t, 5)
        if t >= Dw: A(f"s_waitcnt vmcnt({Dw-1})")
        r = W0 + t*4
        A(f"buffer_load_dwordx4 v[{r}:{r+3}], v4, s[40:43], s48 offen offset:{cs*256}{po}")
        if cs == 4: A("s_add_u32 s48, s48, 5120")
    A("s_lshl_b32 s49, s33, 10"); A("v_add_u32 v32, s49, v32   ; (hw*64+lane)*16")
    A("v_and_b32 v33, 7, v2"); A("v_lshl_add_u32 v33, v33, 2, v1"); A("s_lshl_b32 s49, s33, 5")
    A("v_add_lshl_u32 v33, v33, s49, 2       ; (32hw+4(i&7)+g)*4")
    A("s_mul_i32 s49, s33, 2560"); A("v_add_u32 v34, s49, v5")
    A("v_mov_b32 v35, 0")
    A("s_waitcnt vmcnt(0)")
    stamp(2)
    A("s_cmp_lg_u32 s33, 0"); A("s_cbranch_scc1 L_h_b2")
    A("s_mov_b64 exec, 15")
    A(f"s_mov_b32 s50, {SPIN}")
    A("L_h_pollstat:")
    A(f"ds_read_b64 v[36:37], v27 offset:{L_STAT}")
    A("s_waitcnt lgkmcnt(0)")
    A("v_cmp_eq_u32 vcc, -1, v37")
    A("s_cbranch_vccz L_h_gotstat")
    A("s_sleep 8")
    A("s_sub_u32 s50, s50, 1"); A("s_cmp_lg_u32 s50, 0"); A("s_cbranch_scc1 L_h_pollstat")
    A("L_h_gotstat:")
    A("s_lshl_b32 s49, s31, 5"); A("v_add_u32 v38, s49, v27")
    A(f"global_store_dwordx2 v38, v[36:37], s[18:19] offset:{WS_STAT} sc1")
    A("v_mov_b32 v39, 0"); A("v_mov_b32 v40, 1")
    A("s_waitcnt vmcnt(0)")
    A("s_mov_b64 exec, 1")
    A("global_atomic_add v41, v39, v40, s[16:17] sc0 sc1")
    A("s_waitcnt vmcnt(0)")
    A("v_readfirstlane_b32 s49, v41")
    A("s_mov_b64 exec, -1")
    A("s_and_b32 s49, s49, 255")
    A("s_cmp_lg_u32 s49, 255"); A("s_cbranch_scc1 L_h_notlast")
    A("v_lshlrev_b32 v39, 7, v0"); A(f"v_add_u32 v39, {WS_MBOX}, v39"); A("v_mov_b32 v40, 1")
    for u in range(4):
        A("global_store_dword v39, v40, s[18:19] sc1")
        if u < 3: A("v_add_u32 v39, 0x2000, v39")
    A("L_h_notlast:")
    A("s_mov_b64 exec, 1")
    A(f"s_mov_b32 s50, {SPIN}")
    A("L_h_polldbg:")
    A("global_load_dword v40, v44, s[18:19] sc1")
    A("s_waitcnt vmcnt(0)")
    A("v_cmp_ne_u32 vcc, 1, v40")
    A("s_cbranch_vccz L_h_gotdbg")
    A("s_sleep 32")
    A("s_sub_u32 s50, s50, 1"); A("s_cmp_lg_u32 s50, 0"); A("s_cbranch_scc1 L_h_polldbg")
    A("L_h_gotdbg:")
    A("s_mov_b64 exec, -1")
    A("s_lshl_b32 s49, s30, 7"); A("v_lshl_add_u32 v38, v2, 3, s49   ; bh*128 + i*8")
    A(f"global_load_dwordx2 v[36:37], v38, s[18:19] offset:{WS_STAT} sc1")
    A("s_waitcnt vmcnt(0)")
    A("v_mov_b32 v38, v36")
    for sh in (8, 4, 2, 1): A(f"v_max_f32_dpp v38, v38, v38 row_ror:{sh} {dppm} bank_mask:0xf")
    A("v_sub_f32 v36, v36, v38"); A("v_exp_f32 v36, v36")
    A("v_mul_f32 v37, v37, v36")
    for sh in (8, 4, 2, 1): A(f"v_add_f32_dpp v37, v37, v37 row_ror:{sh} {dppm} bank_mask:0xf")
    A("v_rcp_f32 v38, v37")
    A("v_fma_f32 v39, -v37, v38, 1.0"); A("v_fma_f32 v38, v39, v38, v38")
    A("v_mul_f32 v36, v36, v38")
    A("s_lshl_b32 s49, s27, 2"); A("s_lshl_b64 exec, 15, s49")
    A("v_and_b32 v38, 3, v0"); A("v_lshlrev_b32 v38, 2, v38")
    A(f"ds_write_b32 v38, v36 offset:{L_FAC}")
    A("s_mov_b64 exec, -1")
    A("s_waitcnt lgkmcnt(0)")
    stamp(3)
    A("L_h_b2:")
    A("s_barrier                             ; B2")
    stamp(4)
    A(f"ds_read_b128 v[36:39], v35 offset:{L_FAC}")
    for w in range(4): A(f"ds_read_b32 v{40+w}, v33 offset:{L_O + w*512}")
    A("s_waitcnt lgkmcnt(0)")
    A("v_mul_f32 v40, v36, v40"); A("v_mul_f32 v42, v38, v42")
    A("v_fmac_f32 v40, v37, v41"); A("v_fmac_f32 v42, v39, v43")
    A("v_add_f32 v40, v40, v42")
    A("v_cvt_pk_bf16_f32 v40, v40, v40")
    Y0 = 64
    frag(10, 40, 0)
    for rg in range(8):
        cur = 10 + 4*(rg & 1); nxt = 10 + 4*((rg+1) & 1)
        for cs in range(5):
            r = W0 + (rg*5+cs)*4; y = Y0 + cs*4
            A(f"v_mfma_f32_16x16x32_bf16 v[{y}:{y+3}], v[{cur}:{cur+3}], v[{r}:{r+3}], {'0' if rg == 0 else f'v[{y}:{y+3}]'}")
            if rg < 7 and cs < 4:
                A(f"v_and_b32_dpp v{nxt+cs}, v40, v{6+cs} row_newbcast:{rg+1} {dppm} bank_mask:0xf")
    A("s_mov_b32 exec_hi, 0")
    for cs in range(5): A(f"ds_write_b128 v34, v[{Y0+cs*4}:{Y0+cs*4+3}] offset:{L_Y + cs*512}")
    A("s_mov_b64 exec, -1")
    A("s_waitcnt lgkmcnt(0)")
    stamp(5)
    A("s_barrier")
    A("s_cmp_eq_u32 s33, 3"); A("s_cbranch_scc1 L_consumer")
    for w in range(4): A(f"ds_read_b128 v[{64+w*4}:{67+w*4}], v32 offset:{L_Y + w*2560}")
    A("s_waitcnt lgkmcnt(2)")
    for e in range(4): A(f"v_add_f32 v{64+e}, v{64+e}, v{68+e}")
    A("s_waitcnt lgkmcnt(0)")
    for e in range(4): A(f"v_add_f32 v{72+e}, v{72+e}, v{76+e}")
    for e in range(4): A(f"v_add_f32 v{64+e}, v{64+e}, v{72+e}")
    A("buffer_store_dwordx4 v[64:67], v32, s[44:47], 0 offen sc1")
    if stamps:
        A("s_waitcnt vmcnt(0)"); stamp(6)
    stamp_flush()
    A("s_endpgm")
    A("L_consumer:")
    A("s_cmp_ge_u32 s2, 160"); A("s_cbranch_scc1 L_cons_end")
    A("s_cmp_ge_u32 s2, 80"); A("s_cselect_b32 s49, 1, 0   ; batch")
    A("s_mul_i32 s50, s49, 80"); A("s_sub_u32 s50, s2, s50")
    A(f"s_mul_i32 s51, s49, {128*2560}"); A(f"s_add_u32 s51, s51, {WS_REC}"); A("s_lshl_b32 s52, s50, 5"); A("s_add_u32 s51, s51, s52")
    A("s_add_u32 s44, s18, s51"); A("s_addc_u32 s45, s19, 0"); A(f"s_mov_b32 s46, {128*2560}"); A("s_mov_b32 s47, 0x20000")
    A("v_lshrrev_b32 v36, 1, v0"); A("v_mul_u32_u24 v36, 2560, v36"); A("v_and_b32 v37, 1, v0"); A("v_lshl_add_u32 v36, v37, 4, v36")
    for u in range(1, 4): A(f"s_mov_b32 s{52+u}, {u*32*2560}")
    for u in range(4): A(f"s_mov_b64 s[{60+2*u}:{61+2*u}], -1")
    A(f"s_mov_b32 s50, {SPIN}")
    A("L_cons_poll:")
    for u in range(4):
        A(f"s_mov_b64 exec, s[{60+2*u}:{61+2*u}]")
        A(f"s_cbranch_execz L_cons_skip{u}")
        A(f"buffer_load_dwordx4 v[{64+4*u}:{67+4*u}], v36, s[44:47], {'0' if u == 0 else f's{52+u}'} offen sc1")
        A(f"L_cons_skip{u}:")
    A("s_mov_b64 exec, -1")
    A("s_waitcnt vmcnt(0)")
    for u in range(4):
        r = 64 + 4*u
        A(f"v_max3_u32 v{80+u}, v{r}, v{r+1}, v{r+2}")
    for u in range(4):
        A(f"v_max_u32 v{80+u}, v{80+u}, v{67+4*u}")
    for u in range(4):
        A(f"v_cmp_eq_u32 s[{60+2*u}:{61+2*u}], -1, v{80+u}")
    A("s_or_b64 s[68:69], s[60:61], s[62:63]"); A("s_or_b64 s[70:71], s[64:65], s[66:67]")
    A("s_or_b64 s[68:69], s[68:69], s[70:71]")
    A("s_cbranch_scc0 L_cons_got")
    A("s_sub_u32 s50, s50, 1"); A("s_cmp_lg_u32 s50, 0"); A("s_cbranch_scc1 L_cons_poll")
    A("L_cons_got:")
    stamp(6)
    for e in range(4): A(f"v_add_f32 v{64+e}, v{64+e}, v{68+e}")
    for e in range(4): A(f"v_add_f32 v{72+e}, v{72+e}, v{76+e}")
    for e in range(4): A(f"v_add_f32 v{64+e}, v{64+e}, v{72+e}")
    A("v_permlane32_swap_b32 v64, v65"); A("v_permlane32_swap_b32 v66, v67")
    A("v_add_f32 v64, v64, v65"); A("v_add_f32 v66, v66, v67")
    A("v_permlane16_swap_b32 v64, v66")
    A("v_add_f32 v64, v64, v66")
    A(f"v_add_f32_dpp v64, v64, v64 quad_perm:[2,3,0,1] {dppm} bank_mask:0xf")
    A(f"v_add_f32_dpp v64, v64, v64 row_ror:4 {dppm} bank_mask:0xf")
    A(f"v_add_f32_dpp v64, v64, v64 row_ror:8 {dppm} bank_mask:0xf")
    A("v_cvt_pk_bf16_f32 v64, v64, v64")
    A("v_lshrrev_b32 v38, 5, v0"); A("v_bfe_u32 v39, v0, 4, 1"); A("v_lshl_add_u32 v38, v39, 1, v38")
    A("v_lshl_add_u32 v38, v37, 2, v38"); A("s_lshl_b32 s52, s2, 3"); A("v_add_lshl_u32 v38, v38, s52, 1")
    A("s_mov_b32 exec_lo, 0x00030003"); A("s_mov_b32 exec_hi, 0x00030003")
    A("global_store_short v38, v64, s[14:15]")
    if stamps:
        A("s_waitcnt vmcnt(0)"); stamp(7)
    A("L_cons_end:")
    stamp_flush()
    A("L_end:")
    A("s_endpgm")
    A('.section .rodata,"a"'); A(".p2align 6"); A(f".amdhsa_kernel {NAME}")
    for s_ in ("next_free_vgpr 256", "next_free_sgpr 96", "accum_offset 256", "group_segment_fixed_size 0", "kernarg_size 64",
               "user_sgpr_count 2", "user_sgpr_kernarg_segment_ptr 1", "system_sgpr_workgroup_id_x 1"):
        L.append("  .amdhsa_" + s_)
    A(".end_amdhsa_kernel")
    out, n = pad(L, verbose)
    return HEADER + "\n".join(out) + "\n"

if __name__ == "__main__":
    kw = {}
    for a in sys.argv[2:]:
        k, v = a.split("=")
        kw[k] = int(v) if v.lstrip("-").isdigit() else v
    open(sys.argv[1], "w").write(gen(**kw))
```

```python
import sys, math, struct
sys.path.insert(0, "gen")
from hazard import pad
NAME = "standalone__mha_block_cached__decode_kernel"
HEADER = open("standalone__mha_block_cached__decode.s.ref").read().split("; Override launch")[0] if True else ""

def f32(x): return "0x%08x" % struct.unpack("<I", struct.pack("<f", x))[0]
def brev4(t): return int("{:04b}".format(t)[::-1], 2)

L_Q, L_STAT, L_FAC, L_O, L_Y, L_TOT = 0, 2048, 2080, 4096, 8192, 19456
WS_STAT, WS_MBOX, WS_REC, WS_STAMP = 0, 16384, 65536, 1 << 24
SPIN = 1 << 20

def gen(D=5, Dend=5, Dq=8, Dw=2, rot=5, polkv="nt", polq="nt", polo="nt", stamps=False, verbose=False, prio=0, diag=None):
    L = []
    def A(s): L.append(("" if s.endswith(":") or s.startswith((".", ";")) else "    ") + s)
    pk = " " + polkv if polkv else ""
    pq = " " + polq if polq else ""
    po = " " + polo if polo else ""
    role = ["c"]
    def stamp(k):
        if diag is not None and (role[0] + str(k)) == diag:
            A("s_memrealtime s[94:95]"); A("s_waitcnt lgkmcnt(0)")
        if stamps:
            A("s_memrealtime s[90:91]"); A("s_waitcnt lgkmcnt(0)"); A(f"v_writelane_b32 v63, s90, {k}")
    def stamp_flush():
        if diag is not None and (role[0] == diag[0] or (diag[0] == "c" and role[0] == "s")):
            lab = f"L_diag{len(L)}"
            if role[0] == "s": A("s_barrier")
            A(f"{lab}:")
            A("s_sleep 1")
            A("s_memrealtime s[92:93]"); A("s_waitcnt lgkmcnt(0)")
            A("s_sub_u32 s92, s92, s94"); A("s_cmp_lt_u32 s92, 15000"); A(f"s_cbranch_scc1 {lab}")
        if stamps:
            A("s_mov_b64 exec, -1")
            A("s_getreg_b32 s92, hwreg(HW_REG_XCC_ID)"); A("v_writelane_b32 v63, s92, 63")
            A("s_lshl_b32 s92, s2, 3"); A("s_add_u32 s92, s92, s3"); A("s_lshl_b32 s92, s92, 8"); A(f"s_add_u32 s92, s92, {WS_STAMP}")
            A("v_lshlrev_b32 v62, 2, v0"); A("v_add_u32 v62, s92, v62")
            A("global_store_dword v62, v63, s[18:19]")
    A(f"; @launch grid=(256,1,1) block=(512,1,1) lds={L_TOT}")
    A('.amdgcn_target "amdgcn-amd-amdhsa--gfx950"')
    A(".text"); A(f".globl {NAME}"); A(".p2align 8"); A(f".type {NAME},@function"); A(f"{NAME}:")
    A("s_cmp_ge_u32 s2, 256"); A("s_cbranch_scc1 L_end")
    A("s_load_dwordx16 s[4:19], s[0:1], 0")
    A("v_lshrrev_b32 v1, 6, v0")
    A("s_and_b32 s24, s2, 7"); A("s_lshr_b32 s25, s2, 3")
    A("v_readfirstlane_b32 s3, v1")
    A("v_and_b32 v0, 63, v0                 ; lane")
    A("s_and_b32 s26, s25, 3"); A("s_bfe_u32 s27, s25, 0x20002   ; split"); A("s_lshr_b32 s28, s25, 4   ; b")
    A("s_lshl_b32 s24, s24, 2"); A("s_add_u32 s29, s24, s26   ; h")
    A("s_lshl_b32 s30, s28, 5"); A("s_add_u32 s30, s30, s29   ; bh")
    A("s_lshl_b32 s31, s30, 2"); A("s_add_u32 s31, s31, s27")
    if stamps: A("v_mov_b32 v63, 0")
    stamp(0)
    role[0] = "s"
    A("s_cmp_ge_u32 s3, 4"); A("s_cbranch_scc1 L_helper")

    def masks():
        A("v_and_b32 v10, 15, v0")
        A("v_and_b32 v11, 1, v0"); A("v_lshlrev_b32 v11, 4, v11")
        A("v_mov_b32 v12, 0xffff"); A("v_lshlrev_b32 v11, v11, v12")
        A("v_lshrrev_b32 v10, 1, v10")
        for w in range(4):
            A(f"v_cmp_eq_u32 vcc, {w}, v10"); A(f"v_cndmask_b32 v{6+w}, 0, v11, vcc")
    RING = 128
    S0 = 22
    PA, PB, PC, PD, PT = 40, 42, 44, 46, 48
    TMP = 64
    if prio: A(f"s_setprio {prio}")
    A("v_lshlrev_b32 v1, 4, v0"); A("s_lshl_b32 s33, s3, 12"); A("v_add_u32 v1, s33, v1")
    A(f"s_mul_i32 s32, s2, {rot*16384}"); A("s_and_b32 s32, s32, 0xfffff")
    A("s_lshl_b32 s33, s31, 20")
    A("s_mov_b32 s22, 0x100000"); A("s_mov_b32 s23, 0x20000")
    A("s_waitcnt lgkmcnt(0)")
    A("s_add_u32 s20, s6, s33"); A("s_addc_u32 s21, s7, 0")
    def issue(n):
        r = RING + (n % 32) * 4
        A(f"buffer_load_dwordx4 v[{r}:{r+3}], v1, s[20:23], s32 offen offset:{(n%4)*1024}{pk}")
        if n % 4 == 3:
            A("s_add_u32 s32, s32, 0x4000"); A("s_and_b32 s32, s32, 0xfffff")
    for n in range(31):
        if n >= D: A(f"s_waitcnt vmcnt({D-1})")
        issue(n)
        if n == D - 1:
            A("s_add_u32 s34, s8, s33"); A("s_addc_u32 s35, s9, 0")
            masks()
            A("s_mov_b32 s40, 0xcccccccc"); A("s_mov_b32 s41, 0xcccccccc")
            A("s_mov_b32 s42, 0xaaaaaaaa"); A("s_mov_b32 s43, 0xaaaaaaaa")
            A(f"s_mov_b32 s44, {f32(math.log2(math.e)/math.sqrt(128))}")
            A("v_and_b32 v10, 15, v0"); A("v_lshlrev_b32 v10, 5, v10")
            for r in range(4): A(f"v_mov_b32 v{18+r}, 0")
            A("s_mov_b32 s36, 0")
    stamp(1)
    A("s_barrier")
    for hw in range(4):
        for k in range(2):
            r = TMP + hw*8 + k*4
            A(f"ds_read_b128 v[{r}:{r+3}], v10 offset:{L_Q + hw*512 + k*16}")
    A("s_waitcnt lgkmcnt(4)")
    for e in range(8): A(f"v_add_f32 v{TMP+e}, v{TMP+e}, v{TMP+8+e}")
    A("s_waitcnt lgkmcnt(0)")
    for e in range(8): A(f"v_add_f32 v{TMP+16+e}, v{TMP+16+e}, v{TMP+24+e}")
    for e in range(8): A(f"v_add_f32 v{TMP+e}, v{TMP+e}, v{TMP+16+e}")
    for w in range(4): A(f"v_cvt_pk_bf16_f32 v{2+w}, v{TMP+2*w}, v{TMP+2*w+1}")
    stamp(2)
    dppm = "row_mask:0xf"
    def merges(t, grp):
        o = []
        a = PA + (t & 1); b = PB + ((t >> 1) & 1)
        o.append(f"v_add_f32_dpp v{b}, v{a}, v{a} row_ror:8 {dppm} bank_mask:{'0xc' if t & 1 else '0x3'}")
        if t & 1:
            c = PC + ((t >> 2) & 1)
            if t & 2: o.append(f"v_add_f32_dpp v{c}, v{b}, v{b} row_shr:4 {dppm} bank_mask:0xa")
            else:     o.append(f"v_add_f32_dpp v{c}, v{b}, v{b} row_shl:4 {dppm} bank_mask:0x5")
        if t & 3 == 3:
            c = PC + ((t >> 2) & 1)
            o.append(f"v_add_f32_dpp v{PT + ((t>>2)&1)}, v{c}, v{c} quad_perm:[2,3,0,1] {dppm} bank_mask:0xf")
        if t & 7 == 7:
            d = PD + ((t >> 3) & 1)
            o.append(f"v_cndmask_b32 v{d}, v{PT}, v{PT+1}, s[40:41]")
            o.append(f"v_add_f32_dpp v{d}, v{d}, v{d} quad_perm:[1,0,3,2] {dppm} bank_mask:0xf")
        if t == 15:
            o.append(f"v_cndmask_b32 v{S0+16+grp}, v{PD}, v{PD+1}, s[42:43]")
        return o
    A(".p2align 6")
    A("L_kloop:")
    pend = []
    for i in range(32):
        A(f"s_waitcnt vmcnt({D-1})")
        issue(i + 31)
        if i == 0:
            A("s_cmp_eq_u32 s36, 7"); A("s_cselect_b32 s20, s34, s20"); A("s_cselect_b32 s21, s35, s21")
        r = RING + i*4; a = PA + (i & 1)
        dots = [f"v_dot2_f32_bf16 v{a}, v{r}, v2, 0"] + [f"v_dot2_f32_bf16 v{a}, v{r+k}, v{2+k}, v{a}" for k in (1, 2, 3)]
        seq = []
        for k in range(4):
            seq.append(dots[k])
            if k >= 1 and pend: seq.append(pend.pop(0))
        seq += pend
        for s in seq: A(s)
        pend = merges(i % 16, i // 16)
    for s in pend: A(s)
    for k in range(0, 16, 2): A(f"v_mov_b64 v[{S0+k}:{S0+k+1}], v[{S0+k+2}:{S0+k+3}]")
    A("s_add_u32 s36, s36, 1"); A("s_cmp_lt_u32 s36, 8"); A("s_cbranch_scc1 L_kloop")
    stamp(3)
    A(f"v_max3_f32 v{PA}, v{S0}, v{S0+1}, v{S0+2}")
    A(f"v_max3_f32 v{PA+1}, v{S0+3}, v{S0+4}, v{S0+5}")
    for k in range(6, 14, 4):
        A(f"v_max3_f32 v{PA}, v{PA}, v{S0+k}, v{S0+k+1}")
        A(f"v_max3_f32 v{PA+1}, v{PA+1}, v{S0+k+2}, v{S0+k+3}")
    A(f"v_max3_f32 v{PA}, v{PA}, v{S0+14}, v{S0+15}")
    A(f"v_max_f32 v{PA}, v{PA}, v{PA+1}")
    def xlane(op, x, t):
        for sh in (8, 4, 2, 1): A(f"{op}_dpp v{x}, v{x}, v{x} row_ror:{sh} {dppm} bank_mask:0xf")
        for sw in ("v_permlane16_swap_b32", "v_permlane32_swap_b32"):
            A(f"v_mov_b32 v{t}, v{x}"); A(f"{sw} v{t}, v{x}"); A(f"{op} v{x}, v{x}, v{t}")
    xlane("v_max_f32", PA, PA+1)
    A(f"v_mul_f32 v{PB}, s44, v{PA}")
    for k in range(16): A(f"v_fma_f32 v{S0+k}, v{S0+k}, s44, -v{PB}")
    for k in range(16): A(f"v_exp_f32 v{S0+k}, v{S0+k}")
    A(f"v_add_f32 v{PB+1}, v{S0}, v{S0+1}"); A(f"v_add_f32 v{PA}, v{S0+2}, v{S0+3}")
    for k in range(4, 16, 2):
        A(f"v_add_f32 v{PB+1}, v{PB+1}, v{S0+k}"); A(f"v_add_f32 v{PA}, v{PA}, v{S0+k+1}")
    A(f"v_add_f32 v{PB+1}, v{PB+1}, v{PA}")
    for k in range(16): A(f"v_cvt_pk_bf16_f32 v{S0+k}, v{S0+k}, v{S0+k}")
    xlane("v_add_f32", PB+1, PA)
    A("s_lshl_b32 s33, s3, 3"); A(f"v_mov_b32 v{PA}, s33")
    A("s_mov_b64 exec, 1")
    A(f"ds_write_b64 v{PA}, v[{PB}:{PB+1}] offset:{L_STAT}")
    A("s_mov_b64 exec, -1")
    def frag(fb, p, lane):
        for w in range(4): A(f"v_and_b32_dpp v{fb+w}, v{p}, v{6+w} row_newbcast:{lane} {dppm} bank_mask:0xf")
    frag(10, S0, brev4(0))
    stamp(4)
    def vbody(depth, last):
        for i in range(32):
            if not last or i == 0:
                A(f"s_waitcnt vmcnt({depth-1})"); issue(i + 31)
            elif 31 - i < depth:
                A(f"s_waitcnt vmcnt({31-i})")
            cur = 10 + 4*(i & 1); nxt = 10 + 4*((i+1) & 1)
            if not (last and i == 31): frag(nxt, S0 + (i+1)//16, brev4((i+1) % 16))
            r = RING + i*4
            A(f"v_mfma_f32_16x16x32_bf16 v[18:21], v[{cur}:{cur+3}], v[{r}:{r+3}], v[18:21]")
        if not last:
            for k in range(0, 14, 2): A(f"v_mov_b64 v[{S0+k}:{S0+k+1}], v[{S0+k+2}:{S0+k+3}]")
    nloop = 7 if Dend == D else 6
    A("s_mov_b32 s36, 0")
    A(".p2align 6")
    A("L_vloop:")
    vbody(D, False)
    A("s_add_u32 s36, s36, 1"); A(f"s_cmp_lt_u32 s36, {nloop}"); A("s_cbranch_scc1 L_vloop")
    if Dend != D: vbody(Dend, False)
    stamp(5)
    A(f"v_and_b32 v{PA}, 15, v0"); A(f"v_lshlrev_b32 v{PA}, 5, v{PA}")
    A(f"v_and_b32 v{PA+1}, 16, v0"); A("s_lshl_b32 s33, s3, 9"); A(f"v_add3_u32 v{PA}, v{PA}, v{PA+1}, s33")
    vbody(Dend, True)
    A("s_mov_b32 exec_hi, 0")
    A(f"ds_write_b128 v{PA}, v[18:21] offset:{L_O}")
    A("s_waitcnt lgkmcnt(0)")
    stamp(6)
    A("s_barrier")
    stamp_flush()
    A("s_endpgm")

    W0 = 96
    A(".p2align 6")
    A("L_helper:")
    role[0] = "h"
    A("s_sub_u32 s33, s3, 4                  ; hw")
    A("v_lshrrev_b32 v1, 4, v0               ; g"); A("v_and_b32 v2, 15, v0   ; i")
    A("v_lshl_add_u32 v3, v2, 2, v1"); A("v_lshlrev_b32 v3, 1, v3     ; (4i+g)*2")
    A("s_mul_i32 s34, s28, 1280"); A("s_mul_i32 s35, s33, 320"); A("s_add_u32 s34, s34, s35")
    A("v_lshlrev_b32 v4, 13, v1"); A("v_lshl_add_u32 v4, v2, 4, v4   ; g*8192+i*16")
    A("s_lshl_b32 s35, s29, 8"); A("s_mul_i32 s36, s33, 1310720"); A("s_add_u32 s35, s35, s36")
    A("s_mov_b32 s38, 2560"); A("s_mov_b32 s39, 0x20000")
    A("s_mov_b32 s42, 1302784"); A("s_mov_b32 s43, 0x20000")
    A("s_mov_b32 s48, 0")
    A("s_waitcnt lgkmcnt(0)")
    A("s_mov_b32 s36, s4"); A("s_mov_b32 s37, s5")
    A("s_add_u32 s40, s10, s35"); A("s_addc_u32 s41, s11, 0")
    for u in range(3): A(f"buffer_load_ushort v{22+u}, v3, s[36:39], s34 offen offset:{u*128}")
    def qproc(t):
        fb = 10 + 4*(t & 1)
        frag(fb, 22 + t//16, t % 16)
        r = W0 + t*4
        A(f"v_mfma_f32_16x16x32_bf16 v[18:21], v[{fb}:{fb+3}], v[{r}:{r+3}], {'0' if t == 0 else 'v[18:21]'}")
    Dq_ = min(Dq, 40)
    for t in range(40):
        if t >= Dq_: A(f"s_waitcnt vmcnt({Dq_-1})")
        r = W0 + t*4
        A(f"buffer_load_dwordx4 v[{r}:{r+3}], v4, s[40:43], s48 offen{pq}")
        A("s_add_u32 s48, s48, 0x8000")
        if t == Dq_ - 1:
            masks()
            A("v_and_b32 v5, 16, v0"); A("v_lshl_add_u32 v5, v2, 5, v5   ; n*32+G*16")
            A("s_lshl_b32 s49, s33, 9"); A("v_add_u32 v26, s49, v5")
            A("v_mov_b32 v28, -1"); A("v_mov_b32 v29, -1"); A("v_mov_b32 v30, -1"); A("v_mov_b32 v31, -1")
            A("v_lshlrev_b32 v27, 3, v0")
            A("s_mov_b64 exec, 15"); A(f"ds_write_b64 v27, v[28:29] offset:{L_STAT}"); A("s_mov_b64 exec, -1")
            A(f"s_waitcnt vmcnt({Dq_})")
            for u in range(3): A(f"v_lshl_or_b32 v{22+u}, v{22+u}, 16, v{22+u}")
        if t >= Dq_: qproc(t - Dq_)
    for t in range(40 - Dq_, 40):
        A(f"s_waitcnt vmcnt({39-t})"); qproc(t)
    A("s_mov_b32 exec_hi, 0")
    A(f"ds_write_b128 v26, v[18:21] offset:{L_Q}")
    A("s_mov_b64 exec, -1")
    A("s_waitcnt lgkmcnt(0)")
    stamp(1)
    A("s_barrier                             ; B1")
    A("s_mul_i32 s35, s31, 2560"); A(f"s_add_u32 s35, s35, {WS_REC}")
    A("s_add_u32 s44, s18, s35"); A("s_addc_u32 s45, s19, 0"); A("s_mov_b32 s46, 2560"); A("s_mov_b32 s47, 0x20000")
    A("s_lshl_b32 s35, s29, 2"); A("s_add_u32 s35, s35, s33"); A("s_mul_i32 s35, s35, 40960   ; (h*128+32*hw)*1280")
    A("s_add_u32 s40, s12, s35"); A("s_addc_u32 s41, s13, 0"); A("s_mov_b32 s42, 40960"); A("s_mov_b32 s43, 0x20000")
    A("v_mul_u32_u24 v4, 1280, v1"); A("v_lshl_add_u32 v4, v2, 4, v4   ; g*1280+i*16")
    A("v_lshlrev_b32 v32, 4, v0              ; lane*16")
    A("s_lshl_b32 s49, s31, 7"); A(f"s_add_u32 s49, s49, {WS_MBOX}"); A("v_mov_b32 v44, s49")
    A("s_cmp_lg_u32 s33, 0"); A("s_cbranch_scc1 L_h_noclear")
    for k in range(3):
        A(f"buffer_store_dwordx4 v[28:31], v32, s[44:47], 0 offen offset:{k*1024} sc1")
    A("s_mov_b64 exec, 1"); A("global_store_dword v44, v28, s[18:19] sc1"); A("s_mov_b64 exec, -1")
    A("L_h_noclear:")
    A("s_mov_b32 s48, 0")
    for t in range(40):
        rg, cs = divmod(t, 5)
        if t >= Dw: A(f"s_waitcnt vmcnt({Dw-1})")
        r = W0 + t*4
        A(f"buffer_load_dwordx4 v[{r}:{r+3}], v4, s[40:43], s48 offen offset:{cs*256}{po}")
        if cs == 4: A("s_add_u32 s48, s48, 5120")
    A("s_lshl_b32 s49, s33, 10"); A("v_add_u32 v32, s49, v32   ; (hw*64+lane)*16")
    A("v_and_b32 v33, 7, v2"); A("v_lshl_add_u32 v33, v33, 2, v1"); A("s_lshl_b32 s49, s33, 5")
    A("v_add_lshl_u32 v33, v33, s49, 2       ; (32hw+4(i&7)+g)*4")
    A("s_mul_i32 s49, s33, 2560"); A("v_add_u32 v34, s49, v5")
    A("v_mov_b32 v35, 0")
    A("s_waitcnt vmcnt(0)")
    stamp(2)
    A("s_cmp_lg_u32 s33, 0"); A("s_cbranch_scc1 L_h_b2")
    A("s_mov_b64 exec, 15")
    A(f"s_mov_b32 s50, {SPIN}")
    A("L_h_pollstat:")
    A(f"ds_read_b64 v[36:37], v27 offset:{L_STAT}")
    A("s_waitcnt lgkmcnt(0)")
    A("v_cmp_eq_u32 vcc, -1, v37")
    A("s_cbranch_vccz L_h_gotstat")
    A("s_sleep 8")
    A("s_sub_u32 s50, s50, 1"); A("s_cmp_lg_u32 s50, 0"); A("s_cbranch_scc1 L_h_pollstat")
    A("L_h_gotstat:")
    A("s_lshl_b32 s49, s31, 5"); A("v_add_u32 v38, s49, v27")
    A(f"global_store_dwordx2 v38, v[36:37], s[18:19] offset:{WS_STAT} sc1")
    A("v_mov_b32 v39, 0"); A("v_mov_b32 v40, 1")
    A("s_waitcnt vmcnt(0)")
    A("s_mov_b64 exec, 1")
    A("global_atomic_add v41, v39, v40, s[16:17] sc0 sc1")
    A("s_waitcnt vmcnt(0)")
    A("v_readfirstlane_b32 s49, v41")
    A("s_mov_b64 exec, -1")
    A("s_and_b32 s49, s49, 255")
    A("s_cmp_lg_u32 s49, 255"); A("s_cbranch_scc1 L_h_notlast")
    A("v_lshlrev_b32 v39, 7, v0"); A(f"v_add_u32 v39, {WS_MBOX}, v39"); A("v_mov_b32 v40, 1")
    for u in range(4):
        A("global_store_dword v39, v40, s[18:19] sc1")
        if u < 3: A("v_add_u32 v39, 0x2000, v39")
    A("L_h_notlast:")
    A("s_mov_b64 exec, 1")
    A(f"s_mov_b32 s50, {SPIN}")
    A("L_h_polldbg:")
    A("global_load_dword v40, v44, s[18:19] sc1")
    A("s_waitcnt vmcnt(0)")
    A("v_cmp_ne_u32 vcc, 1, v40")
    A("s_cbranch_vccz L_h_gotdbg")
    A("s_sleep 32")
    A("s_sub_u32 s50, s50, 1"); A("s_cmp_lg_u32 s50, 0"); A("s_cbranch_scc1 L_h_polldbg")
    A("L_h_gotdbg:")
    A("s_mov_b64 exec, -1")
    A("s_lshl_b32 s49, s30, 7"); A("v_lshl_add_u32 v38, v2, 3, s49   ; bh*128 + i*8")
    A(f"global_load_dwordx2 v[36:37], v38, s[18:19] offset:{WS_STAT} sc1")
    A("s_waitcnt vmcnt(0)")
    A("v_mov_b32 v38, v36")
    for sh in (8, 4, 2, 1): A(f"v_max_f32_dpp v38, v38, v38 row_ror:{sh} {dppm} bank_mask:0xf")
    A("v_sub_f32 v36, v36, v38"); A("v_exp_f32 v36, v36")
    A("v_mul_f32 v37, v37, v36")
    for sh in (8, 4, 2, 1): A(f"v_add_f32_dpp v37, v37, v37 row_ror:{sh} {dppm} bank_mask:0xf")
    A("v_rcp_f32 v38, v37")
    A("v_fma_f32 v39, -v37, v38, 1.0"); A("v_fma_f32 v38, v39, v38, v38")
    A("v_mul_f32 v36, v36, v38")
    A("s_lshl_b32 s49, s27, 2"); A("s_lshl_b64 exec, 15, s49")
    A("v_and_b32 v38, 3, v0"); A("v_lshlrev_b32 v38, 2, v38")
    A(f"ds_write_b32 v38, v36 offset:{L_FAC}")
    A("s_mov_b64 exec, -1")
    A("s_waitcnt lgkmcnt(0)")
    stamp(3)
    A("L_h_b2:")
    A("s_barrier                             ; B2")
    stamp(4)
    A(f"ds_read_b128 v[36:39], v35 offset:{L_FAC}")
    for w in range(4): A(f"ds_read_b32 v{40+w}, v33 offset:{L_O + w*512}")
    A("s_waitcnt lgkmcnt(0)")
    A("v_mul_f32 v40, v36, v40"); A("v_mul_f32 v42, v38, v42")
    A("v_fmac_f32 v40, v37, v41"); A("v_fmac_f32 v42, v39, v43")
    A("v_add_f32 v40, v40, v42")
    A("v_cvt_pk_bf16_f32 v40, v40, v40")
    Y0 = 64
    frag(10, 40, 0)
    for rg in range(8):
        cur = 10 + 4*(rg & 1); nxt = 10 + 4*((rg+1) & 1)
        for cs in range(5):
            r = W0 + (rg*5+cs)*4; y = Y0 + cs*4
            A(f"v_mfma_f32_16x16x32_bf16 v[{y}:{y+3}], v[{cur}:{cur+3}], v[{r}:{r+3}], {'0' if rg == 0 else f'v[{y}:{y+3}]'}")
            if rg < 7 and cs < 4:
                A(f"v_and_b32_dpp v{nxt+cs}, v40, v{6+cs} row_newbcast:{rg+1} {dppm} bank_mask:0xf")
    A("s_mov_b32 exec_hi, 0")
    for cs in range(5): A(f"ds_write_b128 v34, v[{Y0+cs*4}:{Y0+cs*4+3}] offset:{L_Y + cs*512}")
    A("s_mov_b64 exec, -1")
    A("s_waitcnt lgkmcnt(0)")
    stamp(5)
    A("s_barrier")
    A("s_cmp_eq_u32 s33, 3"); A("s_cbranch_scc1 L_consumer")
    for w in range(4): A(f"ds_read_b128 v[{64+w*4}:{67+w*4}], v32 offset:{L_Y + w*2560}")
    A("s_waitcnt lgkmcnt(2)")
    for e in range(4): A(f"v_add_f32 v{64+e}, v{64+e}, v{68+e}")
    A("s_waitcnt lgkmcnt(0)")
    for e in range(4): A(f"v_add_f32 v{72+e}, v{72+e}, v{76+e}")
    for e in range(4): A(f"v_add_f32 v{64+e}, v{64+e}, v{72+e}")
    A("buffer_store_dwordx4 v[64:67], v32, s[44:47], 0 offen sc1")
    if stamps:
        A("s_waitcnt vmcnt(0)"); stamp(6)
    stamp_flush()
    A("s_endpgm")
    A("L_consumer:")
    A("s_cmp_ge_u32 s2, 160"); A("s_cbranch_scc1 L_cons_end")
    A("s_cmp_ge_u32 s2, 80"); A("s_cselect_b32 s49, 1, 0   ; batch")
    A("s_mul_i32 s50, s49, 80"); A("s_sub_u32 s50, s2, s50")
    A(f"s_mul_i32 s51, s49, {128*2560}"); A(f"s_add_u32 s51, s51, {WS_REC}"); A("s_lshl_b32 s52, s50, 5"); A("s_add_u32 s51, s51, s52")
    A("s_add_u32 s44, s18, s51"); A("s_addc_u32 s45, s19, 0"); A(f"s_mov_b32 s46, {128*2560}"); A("s_mov_b32 s47, 0x20000")
    A("v_lshrrev_b32 v36, 1, v0"); A("v_mul_u32_u24 v36, 2560, v36"); A("v_and_b32 v37, 1, v0"); A("v_lshl_add_u32 v36, v37, 4, v36")
    for u in range(1, 4): A(f"s_mov_b32 s{52+u}, {u*32*2560}")
    for u in range(4): A(f"s_mov_b64 s[{60+2*u}:{61+2*u}], -1")
    A(f"s_mov_b32 s50, {SPIN}")
    A("L_cons_poll:")
    for u in range(4):
        A(f"s_mov_b64 exec, s[{60+2*u}:{61+2*u}]")
        A(f"s_cbranch_execz L_cons_skip{u}")
        A(f"buffer_load_dwordx4 v[{64+4*u}:{67+4*u}], v36, s[44:47], {'0' if u == 0 else f's{52+u}'} offen sc1")
        A(f"L_cons_skip{u}:")
    A("s_mov_b64 exec, -1")
    A("s_waitcnt vmcnt(0)")
    for u in range(4):
        r = 64 + 4*u
        A(f"v_max3_u32 v{80+u}, v{r}, v{r+1}, v{r+2}")
    for u in range(4):
        A(f"v_max_u32 v{80+u}, v{80+u}, v{67+4*u}")
    for u in range(4):
        A(f"v_cmp_eq_u32 s[{60+2*u}:{61+2*u}], -1, v{80+u}")
    A("s_or_b64 s[68:69], s[60:61], s[62:63]"); A("s_or_b64 s[70:71], s[64:65], s[66:67]")
    A("s_or_b64 s[68:69], s[68:69], s[70:71]")
    A("s_cbranch_scc0 L_cons_got")
    A("s_sub_u32 s50, s50, 1"); A("s_cmp_lg_u32 s50, 0"); A("s_cbranch_scc1 L_cons_poll")
    A("L_cons_got:")
    stamp(6)
    for e in range(4): A(f"v_add_f32 v{64+e}, v{64+e}, v{68+e}")
    for e in range(4): A(f"v_add_f32 v{72+e}, v{72+e}, v{76+e}")
    for e in range(4): A(f"v_add_f32 v{64+e}, v{64+e}, v{72+e}")
    A("v_permlane32_swap_b32 v64, v65"); A("v_permlane32_swap_b32 v66, v67")
    A("v_add_f32 v64, v64, v65"); A("v_add_f32 v66, v66, v67")
    A("v_permlane16_swap_b32 v64, v66")
    A("v_add_f32 v64, v64, v66")
    A(f"v_add_f32_dpp v64, v64, v64 quad_perm:[2,3,0,1] {dppm} bank_mask:0xf")
    A(f"v_add_f32_dpp v64, v64, v64 row_ror:4 {dppm} bank_mask:0xf")
    A(f"v_add_f32_dpp v64, v64, v64 row_ror:8 {dppm} bank_mask:0xf")
    A("v_cvt_pk_bf16_f32 v64, v64, v64")
    A("v_lshrrev_b32 v38, 5, v0"); A("v_bfe_u32 v39, v0, 4, 1"); A("v_lshl_add_u32 v38, v39, 1, v38")
    A("v_lshl_add_u32 v38, v37, 2, v38"); A("s_lshl_b32 s52, s2, 3"); A("v_add_lshl_u32 v38, v38, s52, 1")
    A("s_mov_b32 exec_lo, 0x00030003"); A("s_mov_b32 exec_hi, 0x00030003")
    A("global_store_short v38, v64, s[14:15]")
    if stamps:
        A("s_waitcnt vmcnt(0)"); stamp(7)
    A("L_cons_end:")
    stamp_flush()
    A("L_end:")
    A("s_endpgm")
    A('.section .rodata,"a"'); A(".p2align 6"); A(f".amdhsa_kernel {NAME}")
    for s_ in ("next_free_vgpr 256", "next_free_sgpr 96", "accum_offset 256", "group_segment_fixed_size 0", "kernarg_size 64",
               "user_sgpr_count 2", "user_sgpr_kernarg_segment_ptr 1", "system_sgpr_workgroup_id_x 1"):
        L.append("  .amdhsa_" + s_)
    A(".end_amdhsa_kernel")
    out, n = pad(L, verbose)
    return HEADER + "\n".join(out) + "\n"

if __name__ == "__main__":
    kw = {}
    for a in sys.argv[2:]:
        k, v = a.split("=")
        kw[k] = int(v) if v.lstrip("-").isdigit() else v
    open(sys.argv[1], "w").write(gen(**kw))
```
